```python
import torch

def _softmax(x, axis=-1):
    return torch.softmax(x, dim=axis)
def _gelu(x):
    return torch.nn.functional.gelu(x, approximate="tanh")
def _silu(x):
    return torch.nn.functional.silu(x)
def _sigmoid(x):
    return torch.sigmoid(x)
def _layernorm(x, axis=-1, eps=1e-5):
    m = x.mean(dim=axis, keepdim=True)
    v = x.var(dim=axis, keepdim=True, unbiased=False)
    return (x - m) / torch.sqrt(v + eps)
def _scatter_add(tgt, idx, src, axis=0):
    return tgt.clone().index_add_(axis, idx, src)
def _segment_sum(src, seg, n):
    out = torch.zeros((n,) + src.shape[1:], dtype=src.dtype)
    return out.index_add_(0, seg, src)
def _pad(x, pw):
    flat = tuple(v for pair in reversed(pw) for v in pair)
    return torch.nn.functional.pad(x, flat)

kernel_name = 'parallel_sum__mha_block_cached__glu_gated_bilinear__decode'

def setup_inputs():

    _w = (lambda a: (lambda t: t.to(torch.bfloat16) if t.is_floating_point() else t)(torch.as_tensor(a)))
    def _A_setup():
        B, Sq, D = 1, 1, 576
        H, Sk, Dh = 32, 16384, 128
        return {
            "x": _w((lambda *s: torch.randn(*s, dtype=torch.bfloat16) * 0.05)(B, Sq, D)),
            "k_cache": _w((lambda *s: torch.randn(*s, dtype=torch.bfloat16) * 3.2)(B, H, Sk, Dh)),
            "v_cache": _w((lambda *s: torch.randn(*s, dtype=torch.bfloat16) * 1.6)(B, H, Sk, Dh)),
            "wq": _w((lambda *s: torch.randn(*s, dtype=torch.bfloat16) * 3.2)(D, H * Dh) * (D ** -0.5)),
            "wo": _w((lambda *s: torch.randn(*s, dtype=torch.bfloat16) * 1.6)(H * Dh, D) * ((H * Dh) ** -0.5)),
        }
    _A_in = _A_setup()

    def _B_setup():
        B, S, D, F = 1, 1, 576, 4608
        return {
            "x": _w((lambda *s: torch.randn(*s, dtype=torch.bfloat16) * 0.05)(B, S, D)),
            "w_gate": _w((lambda *s: torch.randn(*s, dtype=torch.bfloat16) * 1.6)(D, F) * (D ** -0.5)),
            "w_up": _w((lambda *s: torch.randn(*s, dtype=torch.bfloat16) * 1.6)(D, F) * (D ** -0.5)),
            "w_down": _w((lambda *s: torch.randn(*s, dtype=torch.bfloat16) * 1.6)(F, D) * (F ** -0.5)),
        }
    _B_in = _B_setup()

    return {
        "A_x": _A_in["x"],
        "A_k_cache": _A_in["k_cache"],
        "A_v_cache": _A_in["v_cache"],
        "A_wq": _A_in["wq"],
        "A_wo": _A_in["wo"],
        "B_x": _B_in["x"],
        "B_w_gate": _B_in["w_gate"],
        "B_w_up": _B_in["w_up"],
        "B_w_down": _B_in["w_down"],
    }

def reference(A_x, A_k_cache, A_v_cache, A_wq, A_wo, B_x, B_w_gate, B_w_up, B_w_down):
    def _A_ref(x, k_cache, v_cache, wq, wo):
        B, Sq, D = x.shape
        H, Dh = 32, 128
        q = (lambda x, *d: x.permute(*d))((x @ wq).reshape(B, Sq, H, Dh), 0, 2, 1, 3)
        scores = torch.einsum("bhqd,bhkd->bhqk", q, k_cache) * (Dh ** -0.5)
        p = _softmax(scores, axis=-1)
        o = torch.einsum("bhqk,bhkd->bhqd", p, v_cache)
        return (lambda x, *d: x.permute(*d))(o, 0, 2, 1, 3).reshape(B, Sq, H * Dh) @ wo

    def _B_ref(x, w_gate, w_up, w_down):
        g = torch.einsum("bsd,df->bsf", x, w_gate)
        u = torch.einsum("bsd,df->bsf", x, w_up)
        h = g * u
        return torch.einsum("bsf,fd->bsd", h, w_down)

    x = A_x
    xn = _layernorm(x, axis=-1)
    return x + _A_ref(xn, A_k_cache, A_v_cache, A_wq, A_wo) + _B_ref(xn, B_w_gate, B_w_up, B_w_down)
```

```python
import re
def regs(tok):
    tok = tok.strip()
    m = re.fullmatch(r'([vsa])\[(\d+):(\d+)\]', tok)
    if m: return {(m.group(1), i) for i in range(int(m.group(2)), int(m.group(3))+1)}
    m = re.fullmatch(r'-?(?:abs\()?([vsa])(\d+)\)?', tok)
    if m: return {(m.group(1), int(m.group(2)))}
    if tok == 'vcc': return {('s', 106), ('s', 107)}
    if tok == 'exec': return {('s', 126), ('s', 127)}
    return set()
TRANS = ('v_exp_f32','v_log_f32','v_rcp_f32','v_rsq_f32','v_sqrt_f32','v_sin_f32','v_cos_f32')
def parse(line):
    line = line.split(';')[0].strip()
    if not line or line.endswith(':') or line.startswith('.'): return None
    parts = line.split(None, 1)
    op = parts[0]; rest = parts[1] if len(parts) > 1 else ''
    ops = [o for o in re.split(r',\s*', rest)]
    toks = []
    for o in ops:
        toks.append(o.split()[0] if o.split() else '')
    d = dict(op=op, line=line, w=set(), r=set(), kind='other', dpp=('_dpp' in op), srcC=set(), sdata=set())
    if op.startswith('v_mfma'):
        d['kind'] = 'mfma'; d['w'] = regs(toks[0]); d['r'] = regs(toks[1]) | regs(toks[2]) | regs(toks[3]); d['srcC'] = regs(toks[3]); d['srcAB'] = regs(toks[1]) | regs(toks[2])
    elif op.startswith('v_'):
        d['kind'] = 'valu'
        if op.startswith('v_cmp'):
            d['w'] = regs(toks[0]); d['r'] = set().union(*[regs(t) for t in toks[1:]])
        elif op.startswith('v_readlane') or op.startswith('v_readfirstlane'):
            d['w'] = regs(toks[0]); d['r'] = set().union(*[regs(t) for t in toks[1:]]); d['rl'] = True
        elif 'permlane' in op:
            d['w'] = regs(toks[0]) | regs(toks[1]); d['r'] = d['w']; d['perm'] = True
        else:
            d['w'] = regs(toks[0]); d['r'] = set().union(*[regs(t) for t in toks[1:]]) if len(toks) > 1 else set()
            if op.startswith('v_fmac') or d['dpp'] or op.startswith('v_dot2c'): d['r'] |= d['w']
            if '_co_' in op: d['w'] |= regs(toks[1])
            if op.startswith('v_cndmask') and len(toks) == 4: pass
    elif op.startswith(('buffer_', 'global_', 'flat_')):
        d['kind'] = 'vmem'
        allr = set().union(*[regs(t) for t in toks]) if toks else set()
        if 'load' in op and ' lds' not in line:
            d['w'] = regs(toks[0]); d['r'] = set().union(*[regs(t) for t in toks[1:]])
        else:
            d['r'] = allr
            if 'store' in op and ('x3' in op or 'x4' in op):
                d['sdata'] = regs(toks[0]) if op.startswith('buffer') else regs(toks[1])
            if 'atomic' in op and 'sc0' in line: d['w'] = regs(toks[0])
    elif op.startswith('ds_'):
        d['kind'] = 'ds'
        if 'read' in op or 'permute' in op or 'swizzle' in op:
            d['w'] = regs(toks[0]); d['r'] = set().union(*[regs(t) for t in toks[1:]])
        else: d['r'] = set().union(*[regs(t) for t in toks])
    elif op.startswith('s_'):
        d['kind'] = 'salu'
        if op == 's_nop': d['nop'] = int(toks[0], 0) + 1
        elif toks and not op.startswith(('s_cmp','s_waitcnt','s_barrier','s_branch','s_cbranch','s_sleep','s_setprio','s_endpgm')):
            d['w'] = regs(toks[0]); d['r'] = set().union(*[regs(t) for t in toks[1:]]) if len(toks) > 1 else set()
    return d
def check(text):
    ins = []
    for ln in text.split('\n'):
        p = parse(ln)
        if p: ins.append(p)
    probs = []
    for i, c in enumerate(ins):
        dist = 0
        for j in range(i-1, max(-1, i-24), -1):
            p = ins[j]
            need = 0; why = ''
            def upd(n, w):
                nonlocal need, why
                if n > need: need, why = n, w
            pw_v = {x for x in p['w'] if x[0] in 'va'}; pw_s = {x for x in p['w'] if x[0] == 's'}
            if p['kind'] == 'valu':
                if c['kind'] == 'mfma' and pw_v & c['r']: upd(2, 'valu->mfma')
                if c['kind'] == 'valu' and c['dpp'] and pw_v & c['r']: upd(2, 'valu->dpp')
                if c['kind'] == 'valu' and c.get('perm') and pw_v & c['r']: upd(2, 'valu->permlane')
                if c['kind'] == 'valu' and c.get('rl') and pw_v & c['r']: upd(1, 'valu->readlane')
                if c['kind'] == 'valu' and pw_s & c['r']: upd(4 if c.get('rl') else 2, 'valu sgpr->valu')
                if c['kind'] == 'valu' and c['op'].startswith(('v_cndmask','v_addc','v_subb')) and 'vcc' in c['line'] and ('s',106) in pw_s: upd(2, 'vcc->cndmask')
                if c['kind'] == 'vmem' and pw_s & c['r']: upd(5, 'valu sgpr->vmem')
                if p['op'].startswith(TRANS) and c['kind'] in ('valu','mfma') and not c['op'].startswith(TRANS) and pw_v & c['r']: upd(1, 'trans->valu')
            if p['kind'] == 'mfma':
                if c['kind'] == 'mfma':
                    if p['w'] & c['srcAB']: upd(8, 'mfma->mfma AB')
                    if p['w'] & c['srcC'] and p['w'] != c['srcC']: upd(6, 'mfma->mfma C overlap')
                elif c['kind'] in ('valu','vmem','ds') and p['w'] & (c['r'] | c['w']): upd(8, 'mfma D->use')
                if c['kind'] == 'valu' and p['srcC'] & c['w']: upd(3, 'mfma srcC WAR')
            if p['sdata'] and c['kind'] == 'valu' and p['sdata'] & c['w']: upd(2, 'store data WAR')
            if need > dist: probs.append(f"HAZARD {why} need {need} have {dist}: [{p['line']}] -> [{c['line']}]")
            dist += p.get('nop', 1)
            if p['op'] in ('s_branch','s_endpgm'): break
    return probs
if __name__ == '__main__':
    import sys
    pr = check(open(sys.argv[1]).read())
    print('\n'.join(pr) if pr else 'no hazards found')
```

```python
import sys
NAME = "parallel_sum__mha_block_cached__glu_gated_bilinear__decode_kernel"
HEADER = open('parallel_sum__mha_block_cached__glu_gated_bilinear__decode.s.ref').read().split('; Override launch')[0]
QL, FIN, YB = 0, 256, 1024
LDS_BYTES = YB + 18*1024
PA, PB, GUG, OX, MLG, QX, EPOCH, STAMP = 0, 0x90000, 0x120000, 0x1b0000, 0x230000, 0x260000, 0x2a0004, 0x300000
LOG2E, SCALE, EPS, INV576 = 0x3fb8aa3b, 0x3db504f3, 0x3727c5ac, 0x3ae38e39
DPPF = "row_mask:0xf bank_mask:0xf"

def gen(R=32, R0=20, P=5, D=5, cu=2, hD=2, kvfl="nt", wfl="nt", stamps=False, grot=1, psleep=2, gsleep=64, qsleep=1, osleep=2, kml=40, gwait=0, fine=(), nohelp=False, noq=False, qwait=8, DV=None, Dend=None, kend=96, feven=False, diag=(), stfl=' sc0 sc1', ldfl=' sc0 sc1'):
    L = []
    def A(s): L.extend(s.split("\n"))
    def fl(x): return (" " + x) if x else ""
    def stamp(i):
        if stamps: A(f"s_memrealtime s[{64+2*i}:{65+2*i}]")
    def vr(b, n=4): return f"v[{b}:{b+n-1}]"
    ST = "@@"
    def wave_reduce(op, v):
        for c in ("row_ror:1 "+DPPF, "row_ror:2 "+DPPF, "row_ror:4 "+DPPF, "row_ror:8 "+DPPF,
                  "row_bcast:15 row_mask:0xa bank_mask:0xf", "row_bcast:31 row_mask:0xc bank_mask:0xf"):
            A(f"s_nop 1\n{op}_dpp v{v}, v{v}, v{v} {c}")
    def masks():
        A("v_and_b32 v3, 1, v10\nv_lshlrev_b32 v3, 4, v3\nv_mov_b32 v4, 0xffff\nv_lshlrev_b32 v4, v3, v4\nv_bfe_u32 v3, v10, 1, 2")
        for w in range(4):
            A(f"v_cmp_eq_u32 vcc, {w}, v3\ns_nop 1\nv_cndmask_b32 v{12+w}, 0, v4, vcc")
    def epoch_load():
        A(f"s_add_u32 s48, s26, {EPOCH}\ns_addc_u32 s49, s27, 0\ns_load_dword s63, s[48:49], 0")
    def epoch_use(vt):
        A(f"s_add_u32 s63, s63, 1\ns_and_b32 s43, s63, 0x3ff\ns_mov_b32 s51, 0xfffffc00\nv_mov_b32 v{vt}, s43")
    def tag(r, vt): A(f"v_and_or_b32 v{r}, v{r}, s51, v{vt}")
    def check(regs, t):
        for r in regs: A(f"v_xor_b32 v{r}, s43, v{r}")
        A(f"v_or3_b32 v{t}, v{regs[0]}, v{regs[1]}, v{regs[2]}")
        rest = regs[3:]
        while len(rest) >= 2: A(f"v_or3_b32 v{t}, v{t}, v{rest[0]}, v{rest[1]}"); rest = rest[2:]
        if rest: A(f"v_or_b32 v{t}, v{t}, v{rest[0]}")
        A(f"v_and_b32 v{t}, 0x3ff, v{t}\nv_cmp_ne_u32 vcc, 0, v{t}")
    def hands(src, o, bc=None):
        for w in range(4):
            if bc is None: A(f"v_and_b32 v{o+w}, v{src}, v{12+w}")
            else: A(f"v_and_b32_dpp v{o+w}, v{src}, v{12+w} row_newbcast:{bc} {DPPF}")
    def norm(src, dst, unpacked=False):
        if not unpacked: A(f"v_lshlrev_b32 v{dst}, 16, v{src}")
        s = dst if not unpacked else src
        A(f"v_sub_f32 v{dst}, v{s}, v45\nv_cvt_pk_bf16_f32 v{dst}, v{dst}, v{dst}\nv_lshlrev_b32 v{dst}, 16, v{dst}\nv_mul_f32 v{dst}, v{dst}, v46\nv_cvt_pk_bf16_f32 v{dst}, v{dst}, v{dst}")
    def layernorm():
        for k in range(8):
            A(f"v_lshlrev_b32 v{28+2*k}, 16, v{16+k}\nv_and_b32 v{29+2*k}, 0xffff0000, v{16+k}")
        for k in range(8): A(f"v_add_f32 v{48+k}, v{28+k}, v{36+k}")
        for st in (4, 2):
            for k in range(st): A(f"v_add_f32 v{48+k}, v{48+k}, v{48+k+st}")
        A("v_add_f32 v44, v48, v49")
        wave_reduce("v_add_f32", 44)
        A(f"s_nop 0\nv_readlane_b32 s40, v44, 63\ns_nop 1\nv_mov_b32 v45, s40\nv_mul_f32 v45, {INV576:#x}, v45")
        for k in range(16): A(f"v_sub_f32 v{48+k}, v{28+k}, v45")
        A("v_mul_f32 v44, v48, v48\nv_mul_f32 v47, v49, v49")
        for k in range(2, 8, 2): A(f"v_fmac_f32 v44, v{48+k}, v{48+k}\nv_fmac_f32 v47, v{49+k}, v{49+k}")
        A("s_mov_b64 exec, 0xff")
        for k in range(8, 16, 2): A(f"v_fmac_f32 v44, v{48+k}, v{48+k}\nv_fmac_f32 v47, v{49+k}, v{49+k}")
        A("s_mov_b64 exec, -1\nv_add_f32 v44, v44, v47")
        wave_reduce("v_add_f32", 44)
        A(f"s_nop 0\nv_readlane_b32 s40, v44, 63\ns_nop 1\nv_mov_b32 v46, s40\nv_mul_f32 v46, {INV576:#x}, v46")
        A(f"v_cvt_pk_bf16_f32 v46, v46, v46\nv_lshlrev_b32 v46, 16, v46\nv_add_f32 v46, {EPS:#x}, v46")
        A("v_cvt_pk_bf16_f32 v46, v46, v46\nv_lshlrev_b32 v46, 16, v46\nv_sqrt_f32 v46, v46\ns_nop 0")
        A("v_cvt_pk_bf16_f32 v46, v46, v46\nv_lshlrev_b32 v46, 16, v46\nv_rcp_f32 v46, v46")
        A("v_cvt_pk_bf16_f32 v45, v45, v45\nv_lshlrev_b32 v45, 16, v45")
    def xload():
        A("s_mov_b32 s36, s4\ns_mov_b32 s37, s5\ns_mov_b32 s38, 1152\ns_mov_b32 s39, 0x20000")
        A("buffer_load_dwordx4 v[16:19], v1, s[36:39], 0 offen\nbuffer_load_dwordx4 v[20:23], v1, s[36:39], 0 offen offset:1024")
    BIG = 112; AOP = 80

    def final(X):
        if "nofinal" in diag: A(f"s_branch L_fin{X}")
        A(f"s_cmp_ge_u32 s2, 72\ns_cbranch_scc1 L_fin{X}")
        A(f"v_and_b32 v3, 31, v0\ns_lshl_b32 s40, s28, 5\nv_add_u32 v3, s40, v3")
        A(f"v_lshrrev_b32 v50, 5, v0\nv_mul_u32_u24 v5, 2304, v3\nv_lshl_add_u32 v5, v50, 4, v5\ns_lshl_b32 s40, s2, 5\nv_add_u32 v5, s40, v5")
        A(f"v_add_u32 v6, {PB:#x}, v5")
        A(f"s_lshl_b32 s40, s2, 4\nv_lshl_add_u32 v8, v0, 1, s40")
        A(f"s_mov_b32 s36, s4\ns_mov_b32 s37, s5\ns_mov_b32 s38, 1152\ns_mov_b32 s39, 0x20000\ns_mov_b32 s44, s22\ns_mov_b32 s45, s23\ns_mov_b32 s46, 1152\ns_mov_b32 s47, 0x20000")
        A("buffer_load_ushort v30, v8, s[36:39], 0 offen")
        A(f"s_lshl_b32 s40, s28, 6\nv_lshl_add_u32 v51, v50, 5, s40")
        A(f"v_lshrrev_b32 v9, 2, v0\nv_lshlrev_b32 v9, 5, v9\nv_and_b32 v12, 3, v0\nv_lshl_add_u32 v9, v12, 2, v9\nv_add_u32 v9, {FIN}, v9")
        for nm, ad, b in (("b", 6, 36), ("a", 5, 32)):
            A(f"L_p{nm}{X}:\nglobal_load_dwordx4 {vr(b)}, v{ad}, s[26:27]{ST}\ns_waitcnt vmcnt(0)")
            check([b, b+1, b+2, b+3], 26)
            A(f"s_and_b64 exec, exec, vcc\ns_cbranch_execz L_d{nm}{X}")
            if psleep: A(f"s_sleep {psleep}")
            A(f"s_sub_u32 s94, s94, 1\ns_cbranch_scc0 L_p{nm}{X}\nL_d{nm}{X}:\ns_mov_b64 exec, -1")
            if nm == "a": stamp(11)
            for c in ("row_ror:1 "+DPPF, "row_ror:2 "+DPPF, "row_ror:4 "+DPPF, "row_ror:8 "+DPPF, "row_bcast:15 row_mask:0xa bank_mask:0xf"):
                for r in range(4): A(f"v_add_f32_dpp v{b+r}, v{b+r}, v{b+r} {c}")
            A(f"s_mov_b32 exec_lo, 0x80000000\ns_mov_b32 exec_hi, 0x80000000\nds_write_b128 v51, {vr(b)} offset:{FIN + (16 if nm == 'b' else 0)}\ns_mov_b64 exec, -1")
        A("s_waitcnt lgkmcnt(0)\ns_barrier")
        stamp(12)
        if X == "h":
            A(f"s_or_b32 s40, s2, s35\ns_cmp_lg_u32 s40, 0\ns_cbranch_scc1 L_fin{X}")
            A(f"s_mov_b64 exec, 1\nv_mov_b32 v3, {EPOCH:#x}\nv_mov_b32 v4, s63\nglobal_store_dword v3, v4, s[26:27]{ST}")
        else:
            A(f"s_cmp_lg_u32 s28, 0\ns_cbranch_scc1 L_fin{X}")
            A("s_mov_b64 exec, 0xff")
            for v in range(8): A(f"ds_read2_b32 v[{32+2*v}:{33+2*v}], v9 offset0:{16*v} offset1:{16*v+4}")
            A("v_lshlrev_b32 v30, 16, v30\ns_waitcnt lgkmcnt(0)")
            for st in (8, 4, 2):
                for k in range(st): A(f"v_add_f32 v{32+k}, v{32+k}, v{32+k+st}")
            A("v_cvt_pk_bf16_f32 v32, v32, v33\nv_and_b32 v33, 0xffff0000, v32\nv_lshlrev_b32 v32, 16, v32")
            A("v_add_f32 v32, v30, v32\nv_cvt_pk_bf16_f32 v32, v32, v32\nv_lshlrev_b32 v32, 16, v32\nv_add_f32 v32, v32, v33\nv_cvt_pk_bf16_f32 v32, v32, v32")
            A("buffer_store_short v32, v8, s[44:47], 0 offen")
        A(f"L_fin{X}:")
        if stamps:
            A("s_waitcnt vmcnt(0)\ns_memrealtime s[90:91]\ns_getreg_b32 s92, hwreg(HW_REG_XCC_ID)\ns_mov_b32 s93, 0\ns_waitcnt lgkmcnt(0)")
            A(f"s_lshl_b32 s40, s2, 3\ns_add_u32 s40, s40, s28\ns_lshl_b32 s40, s40, 7\ns_add_u32 s40, s40, {STAMP}\nv_mov_b32 v6, s40\ns_mov_b64 exec, 1")
            for i in range(15):
                A(f"v_mov_b32 v8, s{64+2*i}\nv_mov_b32 v9, s{65+2*i}\nglobal_store_dwordx2 v6, v[8:9], s[26:27] offset:{8*i}")
        A(f"L_end{X}:\ns_endpgm")

    A(f"; @launch grid=(256,1,1) block=(512,1,1) lds={LDS_BYTES}")
    A('.amdgcn_target "amdgcn-amd-amdhsa--gfx950"\n.text')
    A(f".globl {NAME}\n.p2align 8\n.type {NAME},@function\n{NAME}:")
    stamp(0)
    A("s_cmp_ge_u32 s2, 256\ns_cbranch_scc1 L_end")
    A("s_load_dwordx16 s[4:19], s[0:1], 0\ns_load_dwordx8 s[20:27], s[0:1], 64")
    A("v_lshrrev_b32 v1, 6, v0\nv_and_b32 v0, 63, v0")
    A("s_and_b32 s33, s2, 7\ns_lshr_b32 s34, s2, 3")
    A("v_readfirstlane_b32 s28, v1")
    A("s_lshl_b32 s31, s33, 5\ns_add_u32 s31, s31, s34\ns_lshr_b32 s29, s31, 3\ns_and_b32 s30, s31, 7")
    A("v_lshrrev_b32 v11, 4, v0\nv_and_b32 v10, 15, v0")
    A("s_mov_b32 s94, 0x40000\ns_cmp_lt_u32 s28, 4\ns_cbranch_scc0 L_hstart")
    RING = 256 - 4*R
    assert RING >= 92 and R % 4 == 0 and R0 <= R
    A("v_bfe_u32 v1, v0, 2, 2\nv_lshlrev_b32 v1, 8, v1\nv_lshl_add_u32 v1, v11, 6, v1\nv_and_b32 v3, 3, v0\nv_lshl_add_u32 v1, v3, 4, v1")
    A(f"s_lshl_b32 s40, s29, 22")
    A(f"s_mul_i32 s50, s29, {grot*0x20000}\ns_lshl_b32 s41, s30, 14\ns_add_u32 s50, s50, s41\ns_lshl_b32 s41, s28, 12\ns_add_u32 s50, s50, s41\ns_and_b32 s50, s50, 0x3fffff")
    A("s_mov_b32 s38, 0x400000\ns_mov_b32 s39, 0x20000\ns_mov_b32 s46, 0x400000\ns_mov_b32 s47, 0x20000")
    A("s_waitcnt lgkmcnt(0)")
    A("s_add_u32 s36, s6, s40\ns_addc_u32 s37, s7, 0\ns_add_u32 s44, s8, s40\ns_addc_u32 s45, s9, 0")
    issued = [0]; extra = []
    def outstanding_after(k):
        return issued[0] - k - 1 + sum(1 for e in extra if e > k)
    def issue_unit():
        n = issued[0]; a = n % 4
        base = RING + 4*(n % R)
        srd = "s[36:39]" if n < 128 else "s[44:47]"
        vo = "v1" if n < 128 else "v2"
        A(f"buffer_load_dwordx4 {vr(base)}, {vo}, {srd}, s50 offen offset:{1024*a}{fl(kvfl)}")
        if a == 3: A("s_add_u32 s50, s50, 0x20000\ns_and_b32 s50, s50, 0x3fffff")
        issued[0] += 1
        if issued[0] in fine: stamp(5 + list(fine).index(issued[0]))
    for n in range(min(P, R0)): issue_unit()
    epoch_load()
    A("s_branch L_s2")

    A("L_hstart:")
    A("s_sub_u32 s35, s28, 4\nv_lshlrev_b32 v1, 4, v0")
    A("v_lshrrev_b32 v9, 3, v10\nv_lshl_add_u32 v9, v9, 2, v11\nv_and_b32 v8, 7, v10")
    A("s_cmp_eq_u32 s35, 0\ns_cbranch_scc0 L_h123")
    A("s_mul_i32 s40, s30, 144\nv_lshl_add_u32 v2, v11, 1, s40\nv_lshl_add_u32 v2, v10, 3, v2")
    A("s_mul_i32 s40, s30, 589824\ns_lshl_b32 s41, s29, 8\ns_add_u32 s40, s40, s41")
    A("v_lshlrev_b32 v7, 13, v11\nv_lshl_add_u32 v7, v10, 4, v7\nv_add_u32 v7, s40, v7")
    A("s_mov_b32 s46, 4718592\ns_mov_b32 s47, 0x20000\ns_mov_b32 s42, 0")
    A("s_waitcnt lgkmcnt(0)")
    epoch_load()
    xload()
    A("buffer_load_ushort v24, v2, s[36:39], 0 offen\nbuffer_load_ushort v25, v2, s[36:39], 0 offen offset:128")
    A("s_mov_b32 s44, s10\ns_mov_b32 s45, s11")
    for u in range(18):
        A(f"buffer_load_dwordx4 {vr(BIG+4*u)}, v7, s[44:47], s42 offen{fl(wfl)}")
        if u < 17: A("s_add_u32 s42, s42, 0x8000")
    stamp(1)
    masks()
    A(f"s_lshl_b32 s40, s31, 10\ns_add_u32 s40, s40, {QX}\nv_add_u32 v5, s40, v1")
    A(f"s_lshl_b32 s40, s29, 13\ns_add_u32 s40, s40, {QX}\nv_add_u32 v6, s40, v1\nv_add_u32 v7, 0x1000, v6")
    A("s_waitcnt vmcnt(20)")
    layernorm()
    A("s_waitcnt vmcnt(18) lgkmcnt(0)")
    epoch_use(27)
    for t in range(2): norm(24+t, 24+t)
    stamp(2)
    A("v_mov_b32 v69, s63\nv_mov_b32 v71, s63\nv_mov_b32 v73, s63\nv_mov_b32 v75, s63")
    hands(24, AOP, 0)
    for u in range(18):
        if u + 1 < 18: hands(24 + ((u+1) >> 4), AOP + 4*((u+1) & 1), (u+1) & 15)
        else: A("s_nop 1")
        A(f"s_waitcnt vmcnt({17-u})")
        c = "0" if u == 0 else vr(64)
        A(f"v_mfma_f32_16x16x32_bf16 {vr(64)}, {vr(AOP+4*(u&1))}, {vr(BIG+4*u)}, {c}")
    A("s_mov_b32 exec_hi, 0\ns_nop 6")
    A("v_mov_b32 v68, v64\nv_mov_b32 v70, v65\nv_mov_b32 v72, v66\nv_mov_b32 v74, v67")
    A(f"global_store_dwordx4 v5, v[68:71], s[26:27]{ST}\nglobal_store_dwordx4 v5, v[72:75], s[26:27] offset:512{ST}\ns_mov_b64 exec, -1")
    stamp(3)
    if noq: A("s_branch L_qdone")
    A("v_lshlrev_b32 v4, 10, v0\nv_sub_u32 v4, v4, v1\nv_add_u32 v4, v4, v6")
    if qwait: A(f"s_sleep {qwait}")
    A("s_mov_b64 exec, 0xff")
    A(f"L_qflag:\nglobal_load_dwordx2 v[76:77], v4, s[26:27] offset:1016{ST}\ns_waitcnt vmcnt(0)")
    A("v_cmp_ne_u32 vcc, s63, v77\ns_and_b64 exec, exec, vcc\ns_cbranch_execz L_qflagd")
    if qsleep: A(f"s_sleep {qsleep}")
    A("s_sub_u32 s94, s94, 1\ns_cbranch_scc0 L_qflag\nL_qflagd:\ns_mov_b64 exec, -1")
    A("L_qpoll:")
    for p in range(8): A(f"global_load_dwordx4 {vr(BIG+4*p)}, v{6 + p//4}, s[26:27] offset:{1024*(p%4)}{ST}")
    A("s_waitcnt vmcnt(0)")
    A(f"v_xor_b32 v3, s63, v{BIG+1}")
    for p in range(8):
        for t in (1, 3):
            if p == 0 and t == 1: continue
            A(f"v_xor_b32 v4, s63, v{BIG+4*p+t}\nv_or_b32 v3, v3, v4")
    A("v_cmp_ne_u32 vcc, 0, v3\ns_and_b64 exec, exec, vcc\ns_cbranch_execz L_qdone")
    if qsleep: A(f"s_sleep {qsleep}")
    A("s_sub_u32 s94, s94, 1\ns_cbranch_scc0 L_qpoll\nL_qdone:\ns_mov_b64 exec, -1")
    for st in (4, 2, 1):
        for p in range(st):
            for t in (0, 2): A(f"v_add_f32 v{BIG+4*p+t}, v{BIG+4*p+t}, v{BIG+4*(p+st)+t}")
    A(f"v_cvt_pk_bf16_f32 v3, v{BIG}, v{BIG+2}\nv_lshlrev_b32 v4, 4, v10\nv_and_b32 v5, 1, v11\nv_lshl_add_u32 v4, v5, 3, v4\nv_lshrrev_b32 v5, 1, v11\nv_lshl_add_u32 v4, v5, 2, v4\nds_write_b32 v4, v3 offset:{QL}\ns_waitcnt lgkmcnt(0)")
    stamp(4)
    A("s_barrier")
    if nohelp: A("s_barrier\ns_branch L_finh")
    A("s_branch L_hC")
    A("L_h123:")
    A("s_waitcnt lgkmcnt(0)")
    epoch_load()
    if nohelp:
        A("s_waitcnt lgkmcnt(0)"); epoch_use(27); A("s_barrier\ns_barrier\ns_branch L_finh")
    A("s_cmp_eq_u32 s35, 3\ns_cbranch_scc1 L_h3")
    if not feven:
        A("s_mov_b32 s56, s29\ns_mov_b32 s57, s31\ns_cmp_eq_u32 s35, 1\ns_cbranch_scc1 L_gu")
        A("s_lshr_b32 s56, s33, 1\ns_add_u32 s56, s56, 32\ns_mov_b32 s57, -1")
        A("s_and_b32 s40, s33, 1\ns_lshr_b32 s41, s34, 3\ns_or_b32 s40, s40, s41\ns_cmp_eq_u32 s40, 0\ns_cbranch_scc1 L_gu")
    else:
        A("s_lshr_b32 s40, s33, 1\ns_lshl_b32 s41, s40, 2\ns_and_b32 s42, s29, 3\ns_add_u32 s41, s41, s42")
        A("s_sub_u32 s58, s35, 1\ns_lshl_b32 s56, s58, 4\ns_add_u32 s56, s56, s41")
        A("s_lshl_b32 s57, s41, 3\ns_add_u32 s57, s57, s30\ns_lshl_b32 s57, s57, 1\ns_add_u32 s57, s57, s58")
        A("s_and_b32 s59, s33, 1\ns_cmp_eq_u32 s59, 0\ns_cbranch_scc1 L_gu")
        A("s_add_u32 s56, s40, 32\ns_mov_b32 s57, -1\ns_or_b32 s58, s58, s42\ns_cmp_eq_u32 s58, 0\ns_cbranch_scc1 L_gu")
    A("s_waitcnt lgkmcnt(0)"); epoch_use(27)
    A("s_barrier\ns_branch L_hC")
    A("L_gu:")
    A("s_mul_i32 s40, s30, 144\nv_lshl_add_u32 v2, v11, 1, s40\nv_lshl_add_u32 v2, v10, 3, v2")
    xload()
    A("buffer_load_ushort v24, v2, s[36:39], 0 offen\nbuffer_load_ushort v25, v2, s[36:39], 0 offen offset:128")
    A("s_lshl_b32 s40, s56, 8")
    A("s_add_u32 s44, s16, s40\ns_addc_u32 s45, s17, 0\ns_sub_u32 s46, 5308416, s40\ns_mov_b32 s47, 0x20000")
    A("s_add_u32 s52, s18, s40\ns_addc_u32 s53, s19, 0\ns_mov_b32 s54, s46\ns_mov_b32 s55, 0x20000")
    A("s_mul_i32 s40, s30, 663552\ns_mov_b32 s42, 9216\nv_mul_lo_u32 v6, v11, s42\nv_lshl_add_u32 v6, v10, 4, v6\nv_add_u32 v6, s40, v6")
    def gu_issue(k):
        u, mat = divmod(k, 2)
        if mat == 0: A(f"s_mov_b32 s42, {4*u*9216}")
        A(f"buffer_load_dwordx4 {vr(BIG+4*k)}, v6, {'s[52:55]' if mat else 's[44:47]'}, s42 offen{fl(wfl)}")
    gi = 0
    while gi < hD: gu_issue(gi); gi += 1
    masks()
    A(f"s_waitcnt vmcnt({hD+2})")
    layernorm()
    A(f"s_waitcnt vmcnt({hD}) lgkmcnt(0)")
    epoch_use(27)
    for t in range(2): norm(24+t, 24+t)
    A("s_barrier")
    hands(24, AOP, 0)
    for k in range(36):
        u, mat = divmod(k, 2)
        if mat == 0:
            if u + 1 < 18: hands(24 + ((u+1) >> 4), AOP + 4*((u+1) & 1), (u+1) & 15)
            else: A("s_nop 1")
        A(f"s_waitcnt vmcnt({gi-k-1})")
        d = 64 + 4*mat
        c = "0" if u == 0 else vr(d)
        A(f"v_mfma_f32_16x16x32_bf16 {vr(d)}, {vr(AOP+4*(u&1))}, {vr(BIG+4*k)}, {c}")
        if gi < 36: gu_issue(gi); gi += 1
    A(f"s_lshl_b32 s40, s56, 3\ns_add_u32 s40, s40, s30\ns_lshl_b32 s40, s40, 11\ns_add_u32 s40, s40, {GUG}\nv_add_u32 v5, s40, v1")
    for r in range(8): A(f"v_mov_b32 v{44+2*r+1}, s63")
    for r in range(8): A(f"v_mov_b32 v{44+2*r}, v{64+r}")
    A("s_mov_b32 exec_hi, 0")
    for r in range(4):
        if "nogust" not in diag: A(f"global_store_dwordx4 v5, {vr(44+4*r)}, s[26:27] offset:{r*512}{ST}")
    A("s_mov_b64 exec, -1")
    stamp(4)
    A("s_cmp_eq_u32 s57, -1\ns_cbranch_scc1 L_hC")
    A("s_mul_i32 s40, s57, 20736\ns_add_u32 s44, s20, s40\ns_addc_u32 s45, s21, 0\ns_mov_b32 s46, 20736\ns_mov_b32 s47, 0x20000")
    A("s_mov_b32 s40, 1152\nv_mul_lo_u32 v6, v9, s40\nv_lshl_add_u32 v6, v8, 4, v6\ns_mov_b32 s48, 9216\ns_mov_b32 s49, 18432")
    for k in range(27):
        rg, cg = divmod(k, 9)
        A(f"s_waitcnt vmcnt({hD-1})")
        A(f"buffer_load_dwordx4 {vr(BIG+4*k)}, v6, s[44:47], {('0','s48','s49')[rg]} offen offset:{128*cg}{fl(wfl)}")
    A("s_mul_i32 s40, s57, 18\nv_add_u32 v3, s40, v9")
    for rg in range(3):
        A(f"v_add_u32 v4, {8*rg}, v3\nv_min_u32 v4, 4607, v4\nv_lshrrev_b32 v5, 7, v4\nv_lshlrev_b32 v5, 14, v5\nv_lshl_add_u32 v5, v8, 11, v5\nv_bfe_u32 v7, v4, 3, 4\nv_lshl_add_u32 v5, v7, 4, v5\nv_bfe_u32 v7, v4, 2, 1\nv_lshl_add_u32 v5, v7, 8, v5\nv_bfe_u32 v7, v4, 1, 1\nv_lshl_add_u32 v5, v7, 9, v5\nv_and_b32 v7, 1, v4\nv_lshl_add_u32 v5, v7, 3, v5\nv_add_u32 v{24+rg}, {GUG:#x}, v5")
    for _ in range(gwait): A("s_sleep 127")
    if "nogust" in diag: A("s_branch L_gdone")
    A("L_gpoll:")
    G0 = 32
    for rg in range(3):
        for mat in range(2):
            b = G0 + 4*rg + 2*mat
            A(f"global_load_dwordx2 v[{b}:{b+1}], v{24+rg}, s[26:27] offset:{1024*mat}{ST}")
    A(f"s_waitcnt vmcnt(0)\nv_xor_b32 v3, s63, v{G0+1}")
    for k in range(1, 6): A(f"v_xor_b32 v4, s63, v{G0+2*k+1}\nv_or_b32 v3, v3, v4")
    A("v_cmp_ne_u32 vcc, 0, v3\ns_cbranch_vccz L_gdone")
    A(f"s_sleep {gsleep}\ns_sub_u32 s94, s94, 1\ns_cbranch_scc0 L_gpoll\nL_gdone:")
    for c in ("quad_perm:[1,0,3,2]", "quad_perm:[2,3,0,1]", "row_half_mirror"):
        for k in range(6): A(f"v_add_f32_dpp v{G0+2*k}, v{G0+2*k}, v{G0+2*k} {c} {DPPF}")
    for rg in range(3):
        b = G0+4*rg
        A(f"v_cvt_pk_bf16_f32 v{b}, v{b}, v{b+2}\nv_and_b32 v{b+2}, 0xffff0000, v{b}\nv_lshlrev_b32 v{b}, 16, v{b}\nv_mul_f32 v{b}, v{b}, v{b+2}\nv_cvt_pk_bf16_f32 v{28+rg}, v{b}, v{b}")
    A("v_cmp_gt_u32 vcc, 2, v9\ns_nop 1\nv_cndmask_b32 v30, 0, v30, vcc")
    for rg in range(3): hands(28+rg, AOP+4*rg)
    A("s_nop 1")
    for k in range(27):
        rg, cg = divmod(k, 9)
        c = "0" if rg == 0 else vr(44+4*cg)
        A(f"v_mfma_f32_16x16x32_bf16 {vr(44+4*cg)}, {vr(AOP+4*rg)}, {vr(BIG+4*k)}, {c}")
    A("s_sub_u32 s40, s35, 1\ns_mul_i32 s40, s40, 9216\nv_lshl_add_u32 v3, v0, 4, s40\nv_add_u32 v4, 40, v0\nv_and_b32 v4, 63, v4\nv_lshl_add_u32 v4, v4, 4, s40\ns_nop 4")
    for cg in range(9): A(f"ds_write_b128 v3, {vr(44+4*cg)} offset:{YB+1024*cg}")
    A(f"v_lshlrev_b32 v5, 5, v10\nv_lshl_add_u32 v5, v11, 4, v5\ns_mul_i32 s40, s57, 2304\ns_add_u32 s40, s40, {PB}\nv_add_u32 v5, s40, v5")
    A("s_waitcnt lgkmcnt(0)")
    for cg in range(9): A(f"ds_read_b128 {vr(BIG+4*cg)}, v4 offset:{YB+1024*cg}")
    A("s_waitcnt lgkmcnt(0)")
    for cg in range(9):
        for r in range(4):
            A(f"v_add_f32 v{44+4*cg+r}, v{44+4*cg+r}, v{BIG+4*cg+r}"); tag(44+4*cg+r, 27)
    A("s_mov_b32 exec_lo, 0x00ff00ff\ns_mov_b32 exec_hi, 0")
    for cg in range(9):
        if "nopb" not in diag: A(f"global_store_dwordx4 v5, {vr(44+4*cg)}, s[26:27] offset:{256*cg}{ST}")
    A("s_mov_b64 exec, -1")
    stamp(5)
    A("s_branch L_hC")
    A("L_h3:")
    masks()
    A("s_waitcnt lgkmcnt(0)"); epoch_use(27)
    A("s_barrier")
    A("s_mul_i32 s40, s31, 18432\ns_add_u32 s44, s12, s40\ns_addc_u32 s45, s13, 0\ns_mov_b32 s46, 18432\ns_mov_b32 s47, 0x20000")
    A("s_mov_b32 s41, 4608\nv_mul_lo_u32 v6, v11, s41\nv_lshl_add_u32 v2, v8, 4, v6\nv_lshl_add_u32 v6, v10, 4, v6\ns_mov_b32 s49, 2304")
    for k in range(20):
        pr, rq = divmod(k, 4)
        if k >= hD: A(f"s_waitcnt vmcnt({hD-1})")
        A(f"buffer_load_dwordx4 {vr(BIG+4*k)}, v{2 if pr == 4 else 6}, s[44:47], {'0' if rq < 2 else 's49'} offen offset:{(rq&1)*1152+256*pr}{fl(wfl)}")
    A(f"s_lshl_b32 s40, s29, 14\ns_lshl_b32 s41, s30, 6\ns_add_u32 s40, s40, s41\ns_add_u32 s40, s40, {OX}\nv_lshlrev_b32 v7, 9, v10\nv_lshl_add_u32 v7, v11, 4, v7\nv_add_u32 v7, s40, v7\nv_add_u32 v26, 0x2000, v7")
    A(f"s_lshl_b32 s40, s29, 12\ns_add_u32 s40, s40, {MLG}\nv_lshl_add_u32 v6, v10, 7, s40")
    A(f"v_lshlrev_b32 v5, 5, v10\nv_lshl_add_u32 v5, v11, 4, v5\ns_mul_i32 s40, s31, 2304\nv_add_u32 v5, s40, v5\ns_mov_b32 s61, {LOG2E:#x}")
    stamp(6)
    A("s_waitcnt vmcnt(0)")
    A("s_barrier")
    stamp(7)
    A(f"L_mlp:\nglobal_load_dwordx4 v[16:19], v6, s[26:27]{ST}\nglobal_load_dwordx4 v[20:23], v6, s[26:27] offset:2048{ST}")
    A(f"global_load_dwordx4 v[28:31], v7, s[26:27]{ST}\nglobal_load_dwordx4 v[32:35], v26, s[26:27]{ST}")
    A("s_waitcnt vmcnt(2)\nv_xor_b32 v17, s63, v17\nv_xor_b32 v19, s63, v19\nv_xor_b32 v21, s63, v21\nv_xor_b32 v23, s63, v23\nv_or3_b32 v3, v17, v19, v21\nv_or_b32 v3, v3, v23")
    A("v_cmp_ne_u32 vcc, 0, v3\ns_cbranch_vccz L_mld\ns_sleep 4\ns_waitcnt vmcnt(0)\ns_sub_u32 s94, s94, 1\ns_cbranch_scc0 L_mlp\nL_mld:")
    A("v_max_f32 v24, v16, v20")
    for c in ("row_ror:1", "row_ror:2", "row_ror:4", "row_ror:8"): A(f"s_nop 1\nv_max_f32_dpp v24, v24, v24 {c} {DPPF}")
    A("v_sub_f32 v16, v16, v24\nv_sub_f32 v20, v20, v24\nv_mul_f32 v16, s61, v16\nv_mul_f32 v20, s61, v20\nv_exp_f32 v16, v16\nv_exp_f32 v20, v20\ns_nop 0")
    A("v_mul_f32 v25, v18, v16\nv_fmac_f32 v25, v22, v20")
    for c in ("row_ror:1", "row_ror:2", "row_ror:4", "row_ror:8"): A(f"s_nop 1\nv_add_f32_dpp v25, v25, v25 {c} {DPPF}")
    A("v_rcp_f32 v25, v25\ns_nop 0\nv_mul_f32 v16, v16, v25\nv_mul_f32 v18, v20, v25")
    A("L_oxc:\ns_waitcnt vmcnt(0)")
    check(list(range(28, 36)), 3)
    A("s_and_b64 exec, exec, vcc\ns_cbranch_execz L_oxd")
    if osleep: A(f"s_sleep {osleep}")
    A(f"global_load_dwordx4 v[28:31], v7, s[26:27]{ST}\nglobal_load_dwordx4 v[32:35], v26, s[26:27]{ST}\ns_sub_u32 s94, s94, 1\ns_cbranch_scc0 L_oxc\ns_waitcnt vmcnt(0)")
    A("L_oxd:\ns_mov_b64 exec, -1")
    stamp(8)
    for r in range(4): A(f"v_mul_f32 v{28+r}, v{28+r}, v16")
    for r in range(4): A(f"v_fmac_f32 v{28+r}, v{32+r}, v18")
    for c in ("row_ror:1", "row_ror:2", "row_ror:4", "row_ror:8"):
        for r in range(4): A(f"v_add_f32_dpp v{28+r}, v{28+r}, v{28+r} {c} {DPPF}")
    for r in range(4): A(f"v_cvt_pk_bf16_f32 v{28+r}, v{28+r}, v{28+r}")
    for r in range(4): hands(28+r, AOP+4*r)
    A("s_nop 0")
    def ystore(pr):
        b = 44+4*pr
        for r in range(4): tag(b+r, 27)
        A(f"s_mov_b32 exec_lo, {'0x00ff00ff' if pr == 4 else '-1'}\ns_mov_b32 exec_hi, 0\nglobal_store_dwordx4 v5, {vr(b)}, s[26:27] offset:{512*pr}{ST}\ns_mov_b64 exec, -1")
    for pr in range(5):
        for rq in range(4):
            c = "0" if rq == 0 else vr(44+4*pr)
            A(f"v_mfma_f32_16x16x32_bf16 {vr(44+4*pr)}, {vr(AOP+4*rq)}, {vr(BIG+4*(4*pr+rq))}, {c}")
        if pr >= 2: ystore(pr-2)
    ystore(3); ystore(4)
    stamp(9)
    A("s_branch L_hfin")
    A("L_hC:\ns_barrier")
    A("L_hfin:")
    final("h")

    A("L_s2:")
    masks()
    S = 60
    A("v_lshlrev_b32 v2, 4, v0")
    A("v_and_b32 v3, 3, v10\nv_lshl_add_u32 v3, v11, 2, v3\nv_lshlrev_b32 v3, 4, v3")
    A("s_mov_b32 s52, 0x000f000f\ns_mov_b32 s53, 0x000f000f\ns_mov_b32 s54, 0x00f000f0\ns_mov_b32 s55, 0x00f000f0")
    A("s_mov_b32 s56, 0x0f000f00\ns_mov_b32 s57, 0x0f000f00\ns_mov_b32 s58, 0xf000f000\ns_mov_b32 s59, 0xf000f000")
    A(f"s_mov_b32 s60, {SCALE:#x}\ns_mov_b32 s61, {LOG2E:#x}\nv_mov_b32 v52, 0xff800000")
    A(f"s_lshl_b32 s40, s29, 14\ns_lshl_b32 s41, s30, 2\ns_add_u32 s41, s41, s28\ns_lshl_b32 s42, s41, 9\ns_add_u32 s40, s40, s42\ns_add_u32 s40, s40, {OX}")
    A("v_lshlrev_b32 v57, 5, v10\nv_lshl_add_u32 v57, v11, 4, v57\nv_add_u32 v57, s40, v57")
    A(f"s_lshl_b32 s40, s29, 12\ns_lshl_b32 s41, s41, 7\ns_add_u32 s40, s40, s41\ns_add_u32 s40, s40, {MLG}\nv_and_b32 v58, 7, v0\nv_lshl_add_u32 v58, v58, 4, s40")
    while issued[0] < R0:
        A(f"s_waitcnt vmcnt({P-1})"); issue_unit()
    stamp(1)
    A("s_barrier")
    stamp(2)
    A(f"ds_read_b128 v[4:7], v3 offset:{QL}")
    A("s_waitcnt lgkmcnt(0)")
    for u in range(4):
        for w in range(4): A(f"v_cndmask_b32 v{16+4*u+w}, 0, v{4+w}, s[{52+2*u}:{53+2*u}]")
    A("v_mov_b32 v53, 0")
    epoch_use(59)
    def post(i):
        d = 32 + 4*(i & 1); t = S + i
        A(f"v_mov_b32_dpp v{t}, v{d} quad_perm:[0,0,0,0] {DPPF}\nv_mov_b32_dpp v55, v{d+2} quad_perm:[2,2,2,2] {DPPF}\ns_nop 0")
        A(f"v_add_f32_dpp v{t}, v{d+1}, v{t} quad_perm:[1,1,1,1] {DPPF}\nv_add_f32_dpp v55, v{d+3}, v55 quad_perm:[3,3,3,3] {DPPF}")
        A(f"v_add_f32 v{t}, v{t}, v55")
        if i & 1:
            a, b = t-1, t
            if "noround" not in diag: A(f"v_cvt_pk_bf16_f32 v56, v{a}, v{b}\nv_lshlrev_b32 v{a}, 16, v56\nv_and_b32 v{b}, 0xffff0000, v56")
            A(f"v_mul_f32 v{a}, s60, v{a}\nv_mul_f32 v{b}, s60, v{b}")
            if "noround" not in diag: A(f"v_cvt_pk_bf16_f32 v56, v{a}, v{b}\nv_lshlrev_b32 v{a}, 16, v56\nv_and_b32 v{b}, 0xffff0000, v56")
            A(f"v_max3_f32 v52, v52, v{a}, v{b}")
    since = [0]
    def after_consume(k):
        since[0] += 1
        while issued[0] < 256 and issued[0] - R <= k:
            lag = issued[0] - (k+1)
            Dk = D if issued[0] < 128 or DV is None else DV
            if Dend is not None and issued[0] >= 128 + kend: Dk = Dend
            if lag < Dk: issue_unit(); since[0] = 0
            elif since[0] >= cu:
                A(f"s_waitcnt vmcnt({D-1})"); issue_unit(); since[0] = 0; break
            else: break
    for k in range(128):
        i, a = divmod(k, 4); d = 32 + 4*(i & 1)
        A(f"s_waitcnt vmcnt({outstanding_after(k)})")
        c = "0" if a == 0 else vr(d)
        A(f"v_mfma_f32_16x16x32_bf16 {vr(d)}, {vr(RING+4*(k%R))}, {vr(16+4*a)}, {c}")
        after_consume(k)
        if a == 3 and i > 0: post(i-1)
    A("s_nop 7")
    post(31)
    stamp(3)
    for c in ("row_ror:4 "+DPPF, "row_ror:8 "+DPPF, "row_bcast:15 row_mask:0xa bank_mask:0xf", "row_bcast:31 row_mask:0xc bank_mask:0xf"):
        A(f"s_nop 1\nv_max_f32_dpp v52, v52, v52 {c}")
    A("s_nop 0\nv_readlane_b32 s62, v52, 63\ns_nop 1\nv_mov_b32 v54, s62\nv_mul_f32 v54, s61, v54")
    def expo(i):
        A(f"v_fma_f32 v{S+i}, v{S+i}, s61, -v54\nv_fma_f32 v{S+i+1}, v{S+i+1}, s61, -v54")
        A(f"v_exp_f32 v{S+i}, v{S+i}\nv_exp_f32 v{S+i+1}, v{S+i+1}\ns_nop 0")
        A(f"v_add_f32 v53, v53, v{S+i}\nv_cvt_pk_bf16_f32 v{S+i}, v{S+i}, v{S+i}")
        A(f"v_add_f32 v53, v53, v{S+i+1}\nv_cvt_pk_bf16_f32 v{S+i+1}, v{S+i+1}, v{S+i+1}")
    expo(0)
    A("s_nop 1")
    def ands(k):
        i, a = divmod(k, 4); o = 44 + 4*(k & 1)
        for w in range(4): A(f"v_and_b32_dpp v{o+w}, v{S+i}, v{12+w} row_newbcast:{4*a} {DPPF}")
    ands(0)
    for k in range(128):
        i, a = divmod(k, 4); n = 128 + k; o = 44 + 4*(k & 1)
        if k % 2 == 0 and 2 + k < 32: expo(2 + k)
        if k == kml:
            for c in ("row_ror:4 "+DPPF, "row_ror:8 "+DPPF, "row_bcast:15 row_mask:0xa bank_mask:0xf", "row_bcast:31 row_mask:0xc bank_mask:0xf"):
                A(f"s_nop 1\nv_add_f32_dpp v53, v53, v53 {c}")
            A(f"v_mov_b32 v4, v52\nv_mov_b32 v5, s63\nv_mov_b32 v6, v53\nv_mov_b32 v7, s63\ns_mov_b32 exec_lo, 0\ns_mov_b32 exec_hi, 0xff000000")
            A(f"global_store_dwordx4 v58, v[4:7], s[26:27]{ST}\ns_mov_b64 exec, -1")
            extra.append(issued[0] - 0.5)
        if k + 1 < 128: ands(k+1)
        else: A("s_nop 1")
        A(f"s_waitcnt vmcnt({outstanding_after(n)})")
        c = "0" if k == 0 else vr(40)
        A(f"v_mfma_f32_16x16x32_bf16 {vr(40)}, {vr(o)}, {vr(RING+4*(n%R))}, {c}")
        after_consume(n)
    A("s_mov_b32 exec_hi, 0\ns_nop 6")
    for r in range(4): tag(40+r, 59)
    A(f"global_store_dwordx4 v57, v[40:43], s[26:27]{ST}\ns_mov_b64 exec, -1")
    stamp(4)
    A("s_barrier")
    if nohelp: A("s_branch L_fin")
    final("")
    A(f""".section .rodata,"a"
.p2align 6
.amdhsa_kernel {NAME}
  .amdhsa_next_free_vgpr 256
  .amdhsa_next_free_sgpr 96
  .amdhsa_accum_offset 256
  .amdhsa_group_segment_fixed_size 0
  .amdhsa_kernarg_size 96
  .amdhsa_user_sgpr_count 2
  .amdhsa_user_sgpr_kernarg_segment_ptr 1
  .amdhsa_system_sgpr_workgroup_id_x 1
.end_amdhsa_kernel""")
    for t in range(len(L)):
        if "@@" in L[t]: L[t] = L[t].replace("@@", stfl if "store" in L[t] else ldfl)
    return HEADER + "\n".join(L) + "\n"

if __name__ == "__main__":
    kw = eval("dict(" + (sys.argv[2] if len(sys.argv) > 2 else "") + ")")
    s = gen(**kw)
    open(sys.argv[1], "w").write(s)
    import hazard
    pr = hazard.check(s)
    print("\n".join(pr) if pr else "no hazards")
```

```python
import sys
NAME = "parallel_sum__mha_block_cached__glu_gated_bilinear__decode_kernel"
HEADER = open('parallel_sum__mha_block_cached__glu_gated_bilinear__decode.s.ref').read().split('; Override launch')[0]
QL, FIN, ML4, PR, CL, OP, YB = 0, 256, 512, 576, 640, 1536, 3584
LDS_BYTES = YB + 2*5*1024
PA, GUG, OX, MLG, QX, EPOCH, CNT, STAMP = 0, 0x90000, 0xe0000, 0x100000, 0x110000, 0x130004, 0x131000, 0x300000
LOG2E, SCALE, EPS, INV576 = 0x3fb8aa3b, 0x3db504f3, 0x3727c5ac, 0x3ae38e39
DPPF = "row_mask:0xf bank_mask:0xf"
RED8 = ("quad_perm:[1,0,3,2]", "quad_perm:[2,3,0,1]", "row_half_mirror")

def gen(R=32, R0=24, P=5, D=5, cu=2, hD=3, kvfl="nt", wfl="nt", stamps=False, grot=1, psleep=2, gsleep=64, qsleep=1, osleep=2,
        kml=40, fine=(), nohelp=False, qwait=8, DV=None, Dend=None, kend=96, roles="uni", diag=(), stfl=" sc0 sc1", ldfl=" sc0 sc1", woD=2, qflag=False, NS=28, AH=1, X0=10, nx=8, csleep=1, barD=True, tlb=False, NPO=1, dry=True, DY=None):
    L = []
    def A(s): L.extend(s.split("\n"))
    def fl(x): return (" " + x) if x else ""
    def stamp(i):
        if stamps: A(f"s_memrealtime s[{64+2*i}:{65+2*i}]")
    def vr(b, n=4): return f"v[{b}:{b+n-1}]"
    def wave_reduce(op, v):
        for c in ("row_ror:1 "+DPPF, "row_ror:2 "+DPPF, "row_ror:4 "+DPPF, "row_ror:8 "+DPPF,
                  "row_bcast:15 row_mask:0xa bank_mask:0xf", "row_bcast:31 row_mask:0xc bank_mask:0xf"):
            A(f"s_nop 1\n{op}_dpp v{v}, v{v}, v{v} {c}")
    def masks():
        A("v_and_b32 v3, 1, v10\nv_lshlrev_b32 v3, 4, v3\nv_mov_b32 v4, 0xffff\nv_lshlrev_b32 v4, v3, v4\nv_bfe_u32 v3, v10, 1, 2")
        for w in range(4):
            A(f"v_cmp_eq_u32 vcc, {w}, v3\ns_nop 1\nv_cndmask_b32 v{12+w}, 0, v4, vcc")
    def epoch_load():
        A(f"s_add_u32 s48, s26, {EPOCH}\ns_addc_u32 s49, s27, 0\ns_load_dword s63, s[48:49], 0")
    def epoch_use():
        A(f"s_add_u32 s63, s63, 1\ns_and_b32 s43, s63, 0x3ff\ns_mov_b32 s51, 0xfffffc00\ns_and_b32 s96, s63, 0xff\ns_mov_b32 s97, 0xffffff00")
    def tag(r, vt, bits=10, dst=None): A(f"v_and_or_b32 v{r if dst is None else dst}, v{r}, {'s51' if bits == 10 else 's97'}, v{vt}")
    def check(regs, t, bits=10):
        for r in regs: A(f"v_xor_b32 v{r}, {'s43' if bits == 10 else 's96'}, v{r}")
        A(f"v_or3_b32 v{t}, v{regs[0]}, v{regs[1]}, v{regs[2]}")
        rest = regs[3:]
        while len(rest) >= 2: A(f"v_or3_b32 v{t}, v{t}, v{rest[0]}, v{rest[1]}"); rest = rest[2:]
        if rest: A(f"v_or_b32 v{t}, v{t}, v{rest[0]}")
        A(f"v_and_b32 v{t}, {(1 << bits) - 1:#x}, v{t}\nv_cmp_ne_u32 vcc, 0, v{t}")
    def ppoll(lab, NP, addrs, canon, base, checker, pre_issued=0, slp=0):
        n = len(addrs)
        def iss(k):
            for a in range(n): A(f"global_load_dwordx4 {vr(base + 4*(n*k + a))}, v{addrs[a]}, s[26:27]{ldfl}")
        A("s_mov_b64 s[54:55], -1")
        for k in range(NP - 1):
            iss(k)
            if slp: A(f"s_sleep {slp}")
        A(f"{lab}:")
        for k in range(NP):
            iss((k + NP - 1) % NP)
            A(f"s_waitcnt vmcnt({n*(NP-1)})")
            checker(base + 4*n*k)
            A("s_andn2_b64 exec, exec, vcc")
            for a in range(n):
                for r in range(4): A(f"v_mov_b32 v{canon[a]+r}, v{base + 4*(n*k + a) + r}")
            A(f"s_and_b64 s[54:55], s[54:55], vcc\ns_mov_b64 exec, s[54:55]\ns_cbranch_execz {lab}d")
            if slp: A(f"s_sleep {slp}")
        loop(lab)
        A(f"{lab}d:\ns_mov_b64 exec, -1")
    def loop(lab): A(f"s_sub_u32 s94, s94, 1\ns_cbranch_scc0 {lab}")
    def hands(src, o, bc=None):
        for w in range(4):
            if bc is None: A(f"v_and_b32 v{o+w}, v{src}, v{12+w}")
            else: A(f"v_and_b32_dpp v{o+w}, v{src}, v{12+w} row_newbcast:{bc} {DPPF}")
    def norm(r):
        A(f"v_lshlrev_b32 v{r}, 16, v{r}\nv_sub_f32 v{r}, v{r}, v45\nv_cvt_pk_bf16_f32 v{r}, v{r}, v{r}\nv_lshlrev_b32 v{r}, 16, v{r}\nv_mul_f32 v{r}, v{r}, v46\nv_cvt_pk_bf16_f32 v{r}, v{r}, v{r}")
    def layernorm():
        for k in range(8):
            A(f"v_lshlrev_b32 v{28+2*k}, 16, v{16+k}\nv_and_b32 v{29+2*k}, 0xffff0000, v{16+k}")
        for k in range(8): A(f"v_add_f32 v{48+k}, v{28+k}, v{36+k}")
        for st in (4, 2):
            for k in range(st): A(f"v_add_f32 v{48+k}, v{48+k}, v{48+k+st}")
        A("v_add_f32 v44, v48, v49")
        wave_reduce("v_add_f32", 44)
        A(f"s_nop 0\nv_readlane_b32 s40, v44, 63\ns_nop 1\nv_mov_b32 v45, s40\nv_mul_f32 v45, {INV576:#x}, v45")
        for k in range(16): A(f"v_sub_f32 v{48+k}, v{28+k}, v45")
        A("v_mul_f32 v44, v48, v48\nv_mul_f32 v47, v49, v49")
        for k in range(2, 8, 2): A(f"v_fmac_f32 v44, v{48+k}, v{48+k}\nv_fmac_f32 v47, v{49+k}, v{49+k}")
        A("s_mov_b64 exec, 0xff")
        for k in range(8, 16, 2): A(f"v_fmac_f32 v44, v{48+k}, v{48+k}\nv_fmac_f32 v47, v{49+k}, v{49+k}")
        A("s_mov_b64 exec, -1\nv_add_f32 v44, v44, v47")
        wave_reduce("v_add_f32", 44)
        A(f"s_nop 0\nv_readlane_b32 s40, v44, 63\ns_nop 1\nv_mov_b32 v46, s40\nv_mul_f32 v46, {INV576:#x}, v46")
        A(f"v_cvt_pk_bf16_f32 v46, v46, v46\nv_lshlrev_b32 v46, 16, v46\nv_add_f32 v46, {EPS:#x}, v46")
        A("v_cvt_pk_bf16_f32 v46, v46, v46\nv_lshlrev_b32 v46, 16, v46\nv_sqrt_f32 v46, v46\ns_nop 0")
        A("v_cvt_pk_bf16_f32 v46, v46, v46\nv_lshlrev_b32 v46, 16, v46\nv_rcp_f32 v46, v46")
        A("v_cvt_pk_bf16_f32 v45, v45, v45\nv_lshlrev_b32 v45, 16, v45")
    def xload():
        A("s_mul_i32 s40, s30, 144\nv_lshl_add_u32 v2, v11, 1, s40\nv_lshl_add_u32 v2, v10, 3, v2")
        A("s_mov_b32 s36, s4\ns_mov_b32 s37, s5\ns_mov_b32 s38, 1152\ns_mov_b32 s39, 0x20000")
        A("buffer_load_dwordx4 v[16:19], v1, s[36:39], 0 offen\nbuffer_load_dwordx4 v[20:23], v1, s[36:39], 0 offen offset:1024")
        A("buffer_load_ushort v24, v2, s[36:39], 0 offen\nbuffer_load_ushort v25, v2, s[36:39], 0 offen offset:128")
    BIG = 112; AOP = 80

    def ex(lo, hi): A(f"s_and_b32 exec_lo, s98, {lo}\ns_and_b32 exec_hi, s98, {hi}")
    def exall(): A("s_mov_b64 exec, s[98:99]")
    def final_setup():
        A(f"v_and_b32 v73, 31, v0\ns_lshl_b32 s40, s28, 5\nv_add_u32 v73, s40, v73")
        A(f"v_lshrrev_b32 v74, 5, v0\nv_mul_u32_u24 v68, 2304, v73\nv_lshl_add_u32 v68, v74, 4, v68\ns_min_u32 s41, s2, 71\ns_lshl_b32 s40, s41, 5\nv_add_u32 v68, s40, v68")
        A(f"s_lshl_b32 s40, s41, 4\nv_lshl_add_u32 v69, v0, 1, s40\nv_lshlrev_b32 v70, 2, v0\ns_lshl_b32 s40, s28, 5\nv_lshl_add_u32 v71, v74, 4, s40")
        A(f"s_mov_b32 s36, s4\ns_mov_b32 s37, s5\ns_mov_b32 s38, 1152\ns_mov_b32 s39, 0x20000\ns_mov_b32 s84, s22\ns_mov_b32 s85, s23\ns_mov_b32 s86, 1152\ns_mov_b32 s87, 0x20000" if not stamps else
          f"s_mov_b32 s36, s4\ns_mov_b32 s37, s5\ns_mov_b32 s38, 1152\ns_mov_b32 s39, 0x20000\ns_mov_b32 s52, s22\ns_mov_b32 s53, s23\ns_mov_b32 s54, 1152\ns_mov_b32 s55, 0x20000")
        A("buffer_load_ushort v72, v69, s[36:39], 0 offen\ns_mov_b32 s98, -1\ns_mov_b32 s99, -1")
    OSRD = "s[84:87]" if not stamps else "s[52:55]"
    def final():
        A("L_final:")
        if "nofinal" in diag or nohelp: A(f"s_branch L_fin")
        A(f"s_cmp_ge_u32 s2, 72\ns_cbranch_scc1 L_fin0")
        if barD: A("s_cmp_eq_u32 s98, 0\ns_cbranch_scc1 L_pa\ns_barrier")
        A(f"L_pa:\nglobal_load_dwordx4 v[76:79], v68, s[26:27]{ldfl}\ns_waitcnt vmcnt(0)")
        check([76, 77, 78, 79], 73)
        A(f"s_and_b64 exec, exec, vcc\ns_cbranch_execz L_da")
        if psleep: A(f"s_sleep {psleep}")
        loop(f"L_pa")
        A(f"L_da:"); exall()
        stamp(11)
        for c in ("row_ror:1 "+DPPF, "row_ror:2 "+DPPF, "row_ror:4 "+DPPF, "row_ror:8 "+DPPF, "row_bcast:15 row_mask:0xa bank_mask:0xf"):
            for r in range(4): A(f"v_add_f32_dpp v{76+r}, v{76+r}, v{76+r} {c}")
        ex("0x80000000", "0x80000000")
        A(f"ds_write_b128 v71, v[76:79] offset:{FIN}\ns_waitcnt lgkmcnt(0)\ns_cmp_eq_u32 s98, 0\ns_cbranch_scc1 L_out\ns_barrier")
        stamp(12)
        A(f"s_cmp_lg_u32 s28, 0\ns_cbranch_scc1 L_ep")
        A("L_out:"); ex("0xff", "0")
        for v in range(4): A(f"ds_read2_b32 v[{32+2*v}:{33+2*v}], v70 offset0:{FIN//4+16*v} offset1:{FIN//4+16*v+8}")
        A("v_lshlrev_b32 v72, 16, v72\ns_waitcnt lgkmcnt(0)")
        for st in (4, 2, 1):
            for k in range(st): A(f"v_add_f32 v{32+k}, v{32+k}, v{32+k+st}")
        A("v_add_f32 v32, v72, v32\nv_cvt_pk_bf16_f32 v32, v32, v32")
        A(f"buffer_store_short v32, v69, {OSRD}, 0 offen")
        A("L_fin0:")
        if dry: A("s_cmp_eq_u32 s98, 0\ns_cbranch_scc1 L_real")
        A("s_branch L_fin\nL_ep:")
        A(f"s_cmp_lg_u32 s2, 0\ns_cbranch_scc1 L_fin\ns_cmp_lg_u32 s28, 4\ns_cbranch_scc1 L_fin")
        A(f"s_mov_b64 exec, 1\nv_mov_b32 v3, {EPOCH:#x}\nv_mov_b32 v4, s63\nglobal_store_dword v3, v4, s[26:27]{stfl}")
        A(f"L_fin:")
        if stamps:
            A("s_waitcnt vmcnt(0)\ns_memrealtime s[90:91]\ns_getreg_b32 s92, hwreg(HW_REG_XCC_ID)\ns_mov_b32 s93, 0\ns_waitcnt lgkmcnt(0)")
            A(f"s_lshl_b32 s40, s2, 3\ns_add_u32 s40, s40, s28\ns_lshl_b32 s40, s40, 7\ns_add_u32 s40, s40, {STAMP}\ns_mov_b64 exec, 1\nv_mov_b32 v6, s40")
            for i in range(15):
                A(f"v_mov_b32 v8, s{64+2*i}\nv_mov_b32 v9, s{65+2*i}\nglobal_store_dwordx2 v6, v[8:9], s[26:27] offset:{8*i}")
        A(f"L_end:\ns_endpgm")

    A(f"; @launch grid=(256,1,1) block=(512,1,1) lds={LDS_BYTES}")
    A('.amdgcn_target "amdgcn-amd-amdhsa--gfx950"\n.text')
    A(f".globl {NAME}\n.p2align 8\n.type {NAME},@function\n{NAME}:")
    stamp(0)
    A("s_cmp_ge_u32 s2, 256\ns_cbranch_scc1 L_end")
    A("s_load_dwordx16 s[4:19], s[0:1], 0\ns_load_dwordx8 s[20:27], s[0:1], 64")
    A("v_lshrrev_b32 v1, 6, v0\nv_and_b32 v0, 63, v0")
    A("s_and_b32 s33, s2, 7\ns_lshr_b32 s34, s2, 3")
    A("v_readfirstlane_b32 s28, v1")
    lx = {1: 0, 2: 1, 4: 2, 8: 3}[nx]
    A(f"s_lshr_b32 s29, s33, {lx}\ns_lshl_b32 s29, s29, {2+lx}\ns_lshr_b32 s30, s34, {3-lx}\ns_add_u32 s29, s29, s30")
    A(f"s_and_b32 s30, s33, {nx-1}\ns_lshl_b32 s30, s30, {3-lx}\ns_and_b32 s31, s34, {8//nx-1}\ns_or_b32 s30, s30, s31\ns_lshl_b32 s31, s29, 3\ns_add_u32 s31, s31, s30")
    A("v_lshrrev_b32 v11, 4, v0\nv_and_b32 v10, 15, v0")
    A("s_mov_b32 s94, 0x40000\ns_cmp_lt_u32 s28, 4\ns_cbranch_scc0 L_hstart")
    RING = 256 - 4*R
    assert RING >= 92 and R % 4 == 0 and R0 <= R
    A("v_bfe_u32 v1, v0, 2, 2\nv_lshlrev_b32 v1, 8, v1\nv_lshl_add_u32 v1, v11, 6, v1\nv_and_b32 v3, 3, v0\nv_lshl_add_u32 v1, v3, 4, v1")
    A(f"s_lshl_b32 s40, s29, 22")
    A(f"s_mul_i32 s50, s29, {grot*0x20000}\ns_lshl_b32 s41, s30, 14\ns_add_u32 s50, s50, s41\ns_lshl_b32 s41, s28, 12\ns_add_u32 s50, s50, s41\ns_and_b32 s50, s50, 0x3fffff\ns_mov_b32 s95, s50")
    A("s_mov_b32 s38, 0x400000\ns_mov_b32 s39, 0x20000\ns_mov_b32 s46, 0x400000\ns_mov_b32 s47, 0x20000")
    A("s_waitcnt lgkmcnt(0)")
    A("s_add_u32 s36, s6, s40\ns_addc_u32 s37, s7, 0\ns_add_u32 s44, s8, s40\ns_addc_u32 s45, s9, 0")
    issued = [0]
    NU = 4*NS; NT = 2*NU
    dyn = NS < 32
    def dslot(p): return RING + 4*((NT + (p % 16)) % R)
    def issue_dyn(p, so):
        r = p % 8
        A(f"buffer_load_dwordx4 {vr(dslot(p))}, {'v1' if r < 4 else 'v2'}, {'s[36:39]' if r < 4 else 's[44:47]'}, {so} offen offset:{1024*(r%4)}{fl(kvfl)}")
    def get_claim(dst, tagl):
        A(f"L_cl{tagl}:\nds_read_b32 v56, v59 offset:{CL}\ns_waitcnt lgkmcnt(0)\nv_readfirstlane_b32 {dst}, v56\ns_cmp_lg_u32 {dst}, -1\ns_cbranch_scc1 L_cd{tagl}\ns_sleep 1")
        loop(f"L_cl{tagl}")
        A(f"s_mov_b32 {dst}, 0x40000000\nL_cd{tagl}:\ns_cmp_ge_u32 {dst}, 0x40000000\ns_cselect_b32 s38, 0, s38\ns_cselect_b32 s46, 0, s46\ns_and_b32 {dst}, {dst}, 0x3fffff\ns_add_u32 {dst}, {dst}, s42\nv_add_u32 v59, 4, v59")
        A(f"s_add_u32 s41, s41, 1\nv_mov_b32 v56, s41\nds_write_b32 v58, v56 offset:{PR}")
    def issue_unit():
        n = issued[0]; a = n % 4
        if n >= NT:
            if n == NT: get_claim("s40", "0")
            issue_dyn(n - NT, "s40")
        else:
            base = RING + 4*(n % R)
            srd = "s[36:39]" if n < NU else "s[44:47]"
            vo = "v1" if n < NU else "v2"
            A(f"buffer_load_dwordx4 {vr(base)}, {vo}, {srd}, s50 offen offset:{1024*a}{fl(kvfl)}")
            if n == NU - 1: A("s_mov_b32 s50, s95")
            elif a == 3: A("s_add_u32 s50, s50, 0x20000\ns_and_b32 s50, s50, 0x3fffff")
        issued[0] += 1
        if issued[0] in fine: stamp(5 + list(fine).index(issued[0]))
    for n in range(min(P, R0)): issue_unit()
    epoch_load()
    A("s_branch L_s2")

    A("L_hstart:")
    A("s_sub_u32 s35, s28, 4\nv_lshlrev_b32 v1, 4, v0\nv_and_b32 v8, 7, v10")
    A("s_cmp_eq_u32 s35, 0\ns_cbranch_scc0 L_h123")
    A("s_mul_i32 s40, s30, 589824\ns_lshl_b32 s41, s29, 8\ns_add_u32 s40, s40, s41")
    A("v_lshlrev_b32 v7, 13, v11\nv_lshl_add_u32 v7, v10, 4, v7\nv_add_u32 v7, s40, v7")
    A("s_mov_b32 s46, 4718592\ns_mov_b32 s47, 0x20000\ns_mov_b32 s42, 0")
    A("s_waitcnt lgkmcnt(0)")
    if dyn:
        A(f"s_lshl_b32 s40, s29, 7\ns_add_u32 s40, s40, {CNT}\nv_mov_b32 v26, s40\nv_mov_b32 v3, 0\ns_cmp_eq_u32 s30, 0\ns_cbranch_scc0 L_nors\ns_mov_b64 exec, 1\nglobal_store_dword v26, v3, s[26:27]{stfl}\ns_mov_b64 exec, -1\nL_nors:")
    xload()
    A("s_mov_b32 s44, s10\ns_mov_b32 s45, s11")
    for u in range(18):
        A(f"buffer_load_dwordx4 {vr(BIG+4*u)}, v7, s[44:47], s42 offen{fl(wfl)}")
        if u < 17: A("s_add_u32 s42, s42, 0x8000")
    epoch_load()
    stamp(1)
    masks()
    A(f"v_lshlrev_b32 v5, 5, v10\nv_lshl_add_u32 v5, v11, 4, v5\ns_lshl_b32 s40, s31, 9\ns_add_u32 s40, s40, {QX}\nv_add_u32 v5, s40, v5")
    A(f"s_lshl_b32 s40, s29, 12\ns_add_u32 s40, s40, {QX}\nv_add_u32 v6, s40, v1\nv_lshl_add_u32 v7, v0, 9, s40")
    if dyn: A(f"v_mov_b32 v2, -1\nv_mov_b32 v3, -1\nv_lshlrev_b32 v9, 3, v0\nds_write_b64 v9, v[2:3] offset:{CL}\nv_mov_b32 v9, 0\nds_write_b32 v9, v3 offset:{PR}")
    A("s_waitcnt vmcnt(20)")
    layernorm()
    A("s_waitcnt vmcnt(18) lgkmcnt(0)")
    epoch_use()
    for t in range(2): norm(24+t)
    stamp(2)
    A("v_mov_b32 v27, s96")
    hands(24, AOP, 0)
    for u in range(18):
        if u + 1 < 18: hands(24 + ((u+1) >> 4), AOP + 4*((u+1) & 1), (u+1) & 15)
        else: A("s_nop 1")
        A(f"s_waitcnt vmcnt({17-u})")
        c = "0" if u == 0 else vr(64)
        A(f"v_mfma_f32_16x16x32_bf16 {vr(64)}, {vr(AOP+4*(u&1))}, {vr(BIG+4*u)}, {c}")
    A("s_mov_b32 exec_hi, 0\ns_nop 6")
    for r in range(4): tag(64+r, 27, 8)
    A(f"global_store_dwordx4 v5, v[64:67], s[26:27]{stfl}")
    stamp(3)
    if qwait: A(f"s_sleep {qwait}")
    if not qflag: A("s_branch L_qflagd")
    A("s_mov_b64 exec, 0xff")
    A(f"L_qflag:\nglobal_load_ubyte v76, v7, s[26:27] offset:508{ldfl}\ns_waitcnt vmcnt(0)")
    A("v_cmp_ne_u32 vcc, s96, v76\ns_and_b64 exec, exec, vcc\ns_cbranch_execz L_qflagd")
    if qsleep: A(f"s_sleep {qsleep}")
    loop("L_qflag")
    A("L_qflagd:\ns_mov_b64 exec, -1\nL_qpoll:")
    for p in range(4): A(f"global_load_dwordx4 {vr(BIG+4*p)}, v6, s[26:27] offset:{1024*p}{ldfl}")
    A("s_waitcnt vmcnt(0)")
    check(list(range(BIG, BIG+16)), 3, 8)
    A("s_cbranch_vccz L_qdone")
    loop("L_qpoll")
    A("L_qdone:")
    for r in range(4): A(f"v_add_f32 v{BIG+r}, v{BIG+r}, v{BIG+4+r}\nv_add_f32 v{BIG+8+r}, v{BIG+8+r}, v{BIG+12+r}")
    for r in range(4): A(f"v_add_f32 v{BIG+r}, v{BIG+r}, v{BIG+8+r}")
    for r in range(4): A(f"v_mov_b32 v{BIG+4+r}, v{BIG+r}")
    A("v_and_b32 v4, 31, v0\nv_lshlrev_b32 v4, 3, v4")
    for r in range(4): A(f"v_permlane32_swap_b32 v{BIG+4+r}, v{BIG+r}")
    for r in range(4): A(f"v_add_f32 v{BIG+r}, v{BIG+4+r}, v{BIG+r}")
    A(f"v_cvt_pk_bf16_f32 v{BIG+8}, v{BIG}, v{BIG+1}\nv_cvt_pk_bf16_f32 v{BIG+9}, v{BIG+2}, v{BIG+3}\nds_write_b64 v4, v[{BIG+8}:{BIG+9}] offset:{QL}\ns_waitcnt lgkmcnt(0)")
    stamp(4)
    A("s_barrier")
    if dyn:
        A(f"s_mov_b32 s41, 0\nv_mov_b32 v4, 1\nv_mov_b32 v5, 0\ns_mul_i32 s44, s29, {grot}\ns_add_u32 s44, s44, {NS}")
        A(f"L_srv:\nds_read_b32 v3, v9 offset:{PR}\ns_waitcnt lgkmcnt(0)\nv_readfirstlane_b32 s40, v3\ns_cmp_ge_i32 s40, s41\ns_cbranch_scc1 L_srv2\ns_sleep {csleep}")
        A("s_sub_u32 s94, s94, 1\ns_cbranch_scc0 L_srv\ns_branch L_hC")
        A("L_srv2:\ns_mov_b64 exec, 1\nglobal_atomic_add v3, v26, v4, s[26:27] sc0 sc1\ns_waitcnt vmcnt(0)\nv_readfirstlane_b32 s40, v3")
        A("s_lshr_b32 s42, s40, 3\ns_add_u32 s42, s42, s44\ns_and_b32 s42, s42, 31\ns_lshl_b32 s42, s42, 17\ns_and_b32 s45, s40, 7\ns_lshl_b32 s45, s45, 14\ns_add_u32 s42, s42, s45")
        A(f"s_cmp_lt_u32 s40, {8*(32-NS)}\ns_cselect_b32 s42, s42, 0x40000000\nv_mov_b32 v3, s42\nds_write_b32 v5, v3 offset:{CL}\nv_add_u32 v5, 4, v5\ns_mov_b64 exec, -1")
        A("s_add_u32 s41, s41, 1\ns_cmp_lt_u32 s42, 0x40000000\ns_cbranch_scc1 L_srv\ns_waitcnt lgkmcnt(0)")
    A("s_branch L_hC")
    hx = "s_lshr_b32 s40, s33, 1\ns_lshl_b32 s58, s40, 2\ns_and_b32 s42, s29, 3\ns_add_u32 s58, s58, s42\ns_and_b32 s59, s33, 1"
    A("L_h123:")
    A("s_waitcnt lgkmcnt(0)")
    epoch_load()
    if nohelp:
        A("s_waitcnt lgkmcnt(0)"); epoch_use(); A("s_barrier\ns_branch L_hC")
    A("s_cmp_eq_u32 s35, 3\ns_cbranch_scc1 L_h3")
    A(hx)
    A("s_sub_u32 s60, s35, 1")
    if roles == "split":
        A("s_lshl_b32 s56, s60, 4\ns_add_u32 s56, s56, s58\ns_mov_b32 s57, -1\ns_cmp_eq_u32 s59, 0\ns_cbranch_scc1 L_gu")
        A("s_lshl_b32 s57, s58, 3\ns_add_u32 s57, s57, s30\ns_lshl_b32 s57, s57, 1\ns_add_u32 s57, s57, s60")
        masks()
        A("s_waitcnt lgkmcnt(0)"); epoch_use()
        A("s_barrier\ns_branch L_down")
    else:
        A("s_mov_b32 s56, s29\ns_mov_b32 s57, s31\ns_cmp_eq_u32 s35, 1\ns_cbranch_scc1 L_gu")
        A("s_lshr_b32 s56, s29, 3\ns_add_u32 s56, s56, 32\ns_mov_b32 s57, -1")
        A("s_and_b32 s40, s29, 7\ns_cmp_eq_u32 s40, 0\ns_cbranch_scc1 L_gu")
        A("s_waitcnt lgkmcnt(0)"); epoch_use()
        A("s_barrier\ns_branch L_hC")
    A("L_gu:")
    xload()
    masks()
    A(f"s_waitcnt vmcnt(2)")
    layernorm()
    A(f"s_waitcnt vmcnt(0) lgkmcnt(0)")
    epoch_use()
    for t in range(2): norm(24+t)
    A("s_barrier")
    A("L_gu2:")
    A("s_lshl_b32 s40, s56, 8")
    A("s_add_u32 s44, s16, s40\ns_addc_u32 s45, s17, 0\ns_sub_u32 s46, 5308416, s40\ns_mov_b32 s47, 0x20000")
    A("s_add_u32 s52, s18, s40\ns_addc_u32 s53, s19, 0\ns_mov_b32 s54, s46\ns_mov_b32 s55, 0x20000")
    A("s_mul_i32 s40, s30, 663552\ns_mov_b32 s42, 9216\nv_mul_lo_u32 v6, v11, s42\nv_lshl_add_u32 v6, v10, 4, v6\nv_add_u32 v6, s40, v6")
    def gu_issue(k):
        u, mat = divmod(k, 2)
        if mat == 0: A(f"s_mov_b32 s42, {4*u*9216}")
        A(f"buffer_load_dwordx4 {vr(BIG+4*k)}, v6, {'s[52:55]' if mat else 's[44:47]'}, s42 offen{fl(wfl)}")
    gi = 0
    while gi < hD: gu_issue(gi); gi += 1
    A("v_mov_b32 v27, s96")
    hands(24, AOP, 0)
    for k in range(36):
        u, mat = divmod(k, 2)
        if mat == 0:
            if u + 1 < 18: hands(24 + ((u+1) >> 4), AOP + 4*((u+1) & 1), (u+1) & 15)
            else: A("s_nop 1")
        A(f"s_waitcnt vmcnt({gi-k-1})")
        d = 64 + 4*mat
        c = "0" if u == 0 else vr(d)
        A(f"v_mfma_f32_16x16x32_bf16 {vr(d)}, {vr(AOP+4*(u&1))}, {vr(BIG+4*k)}, {c}")
        if gi < 36: gu_issue(gi); gi += 1
    A(f"s_lshl_b32 s40, s56, 3\ns_add_u32 s40, s40, s30\ns_lshl_b32 s40, s40, 10\ns_add_u32 s40, s40, {GUG}\nv_lshlrev_b32 v5, 5, v10\nv_lshl_add_u32 v5, v11, 4, v5\nv_add_u32 v5, s40, v5\ns_mov_b32 exec_hi, 0")
    for r in range(8): tag(64+r, 27, 8)
    A(f"global_store_dwordx4 v5, v[64:67], s[26:27]{stfl}\nglobal_store_dwordx4 v5, v[68:71], s[26:27] offset:512{stfl}\ns_mov_b64 exec, -1")
    stamp(4)
    A("s_cmp_eq_u32 s57, -1\ns_cbranch_scc1 L_hC")
    A("L_down:")
    A("s_mul_i32 s40, s57, 20736\ns_add_u32 s44, s20, s40\ns_addc_u32 s45, s21, 0\ns_mov_b32 s46, 20736\ns_mov_b32 s47, 0x20000")
    A("v_mul_u32_u24 v6, 1152, v11\nv_lshl_add_u32 v2, v8, 4, v6\nv_lshl_add_u32 v6, v10, 4, v6")
    for k in range(25):
        rq, pr = divmod(k, 5)
        if pr == 0: A(f"s_mov_b32 s42, {4608*rq}")
        A(f"s_waitcnt vmcnt({hD-1})")
        A(f"buffer_load_dwordx4 {vr(BIG+4*k)}, v{2 if pr == 4 else 6}, s[44:47], s42 offen offset:{256*pr}{fl(wfl)}")
    A(f"s_mul_i32 s40, s57, 18\nv_add_u32 v3, s40, v11\nv_lshlrev_b32 v7, 10, v8\nv_add_u32 v7, {GUG:#x}, v7")
    for rq in range(5):
        A(f"v_add_u32 v4, {4*rq}, v3\nv_min_u32 v4, 4607, v4\nv_lshrrev_b32 v5, 7, v4\nv_lshl_add_u32 v5, v5, 13, v7\nv_and_b32 v4, 127, v4\nv_lshl_add_u32 v{16+rq}, v4, 2, v5")
    if roles == "split":
        for _ in range(2): A("s_sleep 127")
    A("L_gpoll:")
    G0 = 28
    for rq in range(5):
        for mat in range(2): A(f"global_load_dword v{G0+2*rq+mat}, v{16+rq}, s[26:27] offset:{512*mat}{ldfl}")
    A(f"s_waitcnt vmcnt(0)")
    check(list(range(G0, G0+10)), 3, 8)
    A(f"s_cbranch_vccz L_gdone\ns_sleep {gsleep}")
    loop("L_gpoll")
    A("L_gdone:")
    for c in RED8:
        for k in range(10): A(f"v_add_f32_dpp v{G0+k}, v{G0+k}, v{G0+k} {c} {DPPF}")
    for rq in range(5):
        b = G0+2*rq
        A(f"v_cvt_pk_bf16_f32 v{b}, v{b}, v{b+1}\nv_and_b32 v{b+1}, 0xffff0000, v{b}\nv_lshlrev_b32 v{b}, 16, v{b}\nv_mul_f32 v{b}, v{b}, v{b+1}\nv_cvt_pk_bf16_f32 v{b}, v{b}, v{b}")
    A(f"s_mov_b32 exec_lo, 0\nv_mov_b32 v{G0+8}, 0\ns_mov_b64 exec, -1")
    for rq in range(5): hands(G0+2*rq, AOP+4*rq)
    A("s_sub_u32 s40, s35, 1\ns_mul_i32 s40, s40, 5120\nv_add_u32 v3, s40, v1")
    for k in range(25):
        rq, pr = divmod(k, 5)
        c = "0" if rq == 0 else vr(44+4*pr)
        A(f"v_mfma_f32_16x16x32_bf16 {vr(44+4*pr)}, {vr(AOP+4*rq)}, {vr(BIG+4*k)}, {c}")
    A("s_nop 3")
    for pr in range(5): A(f"s_nop 0\nds_write_b128 v3, {vr(44+4*pr)} offset:{YB+1024*pr}")
    A("s_waitcnt lgkmcnt(0)")
    stamp(5)
    A("s_branch L_hC")
    A("L_h3:")
    if tlb:
        A("s_lshl_b32 s40, s29, 22\ns_add_u32 s44, s6, s40\ns_addc_u32 s45, s7, 0\ns_add_u32 s52, s8, s40\ns_addc_u32 s53, s9, 0")
        A("v_and_b32 v3, 3, v0\nv_lshlrev_b32 v3, 20, v3\nv_add_u32 v3, 0xfff80, v3\ns_mov_b64 exec, 0xf")
        A("global_load_dword v100, v3, s[44:45] nt\nglobal_load_dword v101, v3, s[52:53] nt\ns_mov_b64 exec, -1")
    masks()
    A("s_waitcnt lgkmcnt(0)"); epoch_use()
    A(f"v_mov_b32 v27, s43\ns_barrier")
    A("s_mul_i32 s40, s31, 18432\ns_add_u32 s44, s12, s40\ns_addc_u32 s45, s13, 0\ns_mov_b32 s46, 18432\ns_mov_b32 s47, 0x20000")
    A("v_mul_u32_u24 v6, 4608, v11\nv_lshl_add_u32 v2, v8, 4, v6\nv_lshl_add_u32 v6, v10, 4, v6\ns_mov_b32 s49, 2304")
    for k in range(20):
        pr, rq = divmod(k, 4)
        if k >= woD: A(f"s_waitcnt vmcnt({woD-1})")
        A(f"buffer_load_dwordx4 {vr(BIG+4*k)}, v{2 if pr == 4 else 6}, s[44:47], {'0' if rq < 2 else 's49'} offen offset:{(rq&1)*1152+256*pr}{fl(wfl)}")
    stamp(6)
    A(f"v_lshlrev_b32 v4, 5, v10\nv_lshl_add_u32 v5, v11, 4, v4\nv_and_b32 v3, 1, v11\nv_lshl_add_u32 v4, v3, 4, v4")
    A(f"s_lshl_b32 s40, s31, 9\ns_add_u32 s40, s40, {OX}\nv_add_u32 v3, s40, v4")
    A(f"s_lshl_b32 s40, s29, 12\ns_lshl_b32 s41, s30, 6\ns_add_u32 s40, s40, s41\ns_add_u32 s40, s40, {OX}\nv_lshlrev_b32 v7, 9, v8\nv_lshl_add_u32 v7, v11, 4, v7\nv_add_u32 v7, s40, v7")
    A(f"s_mul_i32 s40, s31, 2304\nv_add_u32 v5, s40, v5")
    A(f"s_lshl_b32 s40, s31, 7\ns_add_u32 s40, s40, {MLG}\nv_add_u32 v2, s40, v1\ns_lshl_b32 s40, s29, 10\ns_add_u32 s40, s40, {MLG}\nv_lshl_add_u32 v6, v8, 7, s40")
    A("v_mov_b32 v9, 0\nv_mov_b32 v17, s63\nv_mov_b32 v19, s63\ns_waitcnt vmcnt(0)")
    if roles == "split": A("s_and_b32 s59, s33, 1")
    else: A("s_mov_b32 s59, 1")
    final_setup()
    if dry: A("s_mov_b32 s98, 0\ns_mov_b32 s99, 0\ns_mov_b64 exec, 0\ns_branch L_tail\nL_real:\ns_mov_b32 s98, -1\ns_mov_b32 s99, -1\ns_mov_b64 exec, -1")
    stamp(10)
    A("s_barrier")
    A("L_tail:")
    stamp(7)
    A(f"ds_read_b128 v[20:23], v9 offset:{ML4}\nds_read_b128 v[64:67], v9 offset:{ML4+16}")
    for w in range(4): A(f"ds_read_b128 {vr(28+4*w)}, v4 offset:{OP+512*w}")
    A("s_waitcnt lgkmcnt(5)\nv_max3_f32 v16, v20, v21, v22\nv_max_f32 v16, v16, v23")
    for w in range(4): A(f"v_sub_f32 v{20+w}, v{20+w}, v16")
    for w in range(4): A(f"v_exp_f32 v{20+w}, v{20+w}")
    A("s_waitcnt lgkmcnt(3)")
    for r in range(4): A(f"v_mul_f32 v{28+r}, v{28+r}, v20")
    for w in range(1, 4):
        A(f"s_waitcnt lgkmcnt({3-w})")
        for r in range(4): A(f"v_fmac_f32 v{28+r}, v{28+4*w+r}, v{20+w}")
    for r in range(4): tag(28+r, 27)
    A(f"s_mov_b32 exec_hi, 0\nglobal_store_dwordx4 v3, v[28:31], s[26:27]{stfl}")
    A("v_mul_f32 v18, v64, v20\nv_fmac_f32 v18, v65, v21\nv_fmac_f32 v18, v66, v22\nv_fmac_f32 v18, v67, v23")
    ex("0xff", "0"); A(f"global_store_dwordx4 v2, v[16:19], s[26:27]{stfl}"); exall()
    stamp(1)
    if "ack" in diag: A("s_waitcnt vmcnt(0)"); stamp(2)
    if NPO == 1: A(f"global_load_dwordx4 v[36:39], v6, s[26:27]{ldfl}\nglobal_load_dwordx4 v[32:35], v7, s[26:27]{ldfl}")
    for pr in range(5): A(f"ds_read_b128 {vr(44+4*pr)}, v1 offset:{YB+1024*pr}")
    if roles == "split":
        for pr in range(5): A(f"ds_read_b128 {vr(AOP+4*pr)}, v1 offset:{YB+5120+1024*pr}")
        A("s_waitcnt lgkmcnt(0)")
        for r in range(20): A(f"v_add_f32 v{44+r}, v{44+r}, v{AOP+r}")
    A("s_waitcnt lgkmcnt(0)")
    if NPO > 1:
        A("L_oxc:")
        def ck(b):
            check([b, b+1, b+2, b+3], 26)
            A(f"v_cmp_ne_u32 s[52:53], s63, v{b+5}\nv_cmp_ne_u32 s[56:57], s63, v{b+7}\ns_or_b64 vcc, vcc, s[52:53]\ns_or_b64 vcc, vcc, s[56:57]")
        ppoll("L_ox", NPO, [7, 6], [32, 36], 192, ck, slp=osleep)
    else:
        A("L_oxc:\ns_waitcnt vmcnt(0)")
        check([32, 33, 34, 35], 26)
        A("v_cmp_ne_u32 s[56:57], s63, v37\nv_cmp_ne_u32 s[60:61], s63, v39\ns_or_b64 vcc, vcc, s[56:57]\ns_or_b64 vcc, vcc, s[60:61]")
        A("s_and_b64 exec, exec, vcc\ns_cbranch_execz L_oxd")
        if osleep: A(f"s_sleep {osleep}")
        A(f"global_load_dwordx4 v[36:39], v6, s[26:27]{ldfl}\nglobal_load_dwordx4 v[32:35], v7, s[26:27]{ldfl}")
        loop("L_oxc")
        A("s_waitcnt vmcnt(0)\nL_oxd:"); exall()
    stamp(8)
    A(f"v_max_f32_dpp v24, v36, v36 {RED8[0]} {DPPF}")
    for c in RED8[1:]: A(f"s_nop 1\nv_max_f32_dpp v24, v24, v24 {c} {DPPF}")
    A("v_sub_f32 v24, v36, v24\nv_exp_f32 v24, v24\ns_nop 0\nv_mul_f32 v36, v38, v24")
    for r in range(4): A(f"v_mul_f32 v{32+r}, v{32+r}, v24")
    for c in RED8:
        for r in (4, 0, 1, 2, 3): A(f"v_add_f32_dpp v{32+r}, v{32+r}, v{32+r} {c} {DPPF}")
    A("v_rcp_f32 v36, v36\ns_nop 0")
    for r in range(4): A(f"v_mul_f32 v{32+r}, v{32+r}, v36")
    for r in range(4): A(f"v_cvt_pk_bf16_f32 v{32+r}, v{32+r}, v{32+r}")
    for r in range(4): hands(32+r, AOP+4*r)
    A("s_nop 0")
    def ystore(pr):
        b = 44+4*pr
        for r in range(4): tag(b+r, 27)
        A(f"s_and_b32 exec_lo, s98, {'0x00ff00ff' if pr == 4 else '-1'}\ns_mov_b32 exec_hi, 0\nglobal_store_dwordx4 v5, {vr(b)}, s[26:27] offset:{512*pr}{stfl}"); exall()
    for pr in range(5):
        for rq in range(4):
            A(f"v_mfma_f32_16x16x32_bf16 {vr(44+4*pr)}, {vr(AOP+4*rq)}, {vr(BIG+4*(4*pr+rq))}, {vr(44+4*pr)}")
        if pr >= 2: ystore(pr-2)
    ystore(3); ystore(4)
    stamp(9)
    if "ack" in diag: A("s_waitcnt vmcnt(0)"); stamp(3)
    final()
    A("L_hC:\ns_barrier")
    final_setup()
    A("s_branch L_final")

    A("L_s2:")
    masks()
    S = 60
    A("v_lshlrev_b32 v2, 4, v0")
    A("v_and_b32 v3, 3, v10\nv_lshl_add_u32 v3, v11, 2, v3\nv_lshlrev_b32 v3, 4, v3")
    A("s_mov_b32 s52, 0x000f000f\ns_mov_b32 s53, 0x000f000f\ns_mov_b32 s54, 0x00f000f0\ns_mov_b32 s55, 0x00f000f0")
    A("s_mov_b32 s56, 0x0f000f00\ns_mov_b32 s57, 0x0f000f00\ns_mov_b32 s58, 0xf000f000\ns_mov_b32 s59, 0xf000f000")
    A(f"s_mov_b32 s60, {SCALE:#x}\ns_mov_b32 s61, {LOG2E:#x}\nv_mov_b32 v52, 0xff800000")
    A("v_and_b32 v57, 1, v11\nv_lshlrev_b32 v57, 4, v57\nv_lshl_add_u32 v57, v10, 5, v57\ns_lshl_b32 s41, s28, 9\nv_add_u32 v57, s41, v57")
    A("s_lshl_b32 s41, s28, 2\nv_mov_b32 v58, s41\nv_mov_b32 v59, 0\ns_lshl_b32 s42, s28, 12")
    while issued[0] < R0:
        A(f"s_waitcnt vmcnt({P-1})"); issue_unit()
    stamp(1)
    A("s_barrier")
    stamp(2)
    A(f"ds_read_b128 v[4:7], v3 offset:{QL}")
    A("s_waitcnt lgkmcnt(0)")
    for u in range(4):
        for w in range(4): A(f"v_cndmask_b32 v{16+4*u+w}, 0, v{4+w}, s[{52+2*u}:{53+2*u}]")
    A("v_mov_b32 v53, 0")
    epoch_use()
    def post(i):
        d = 32 + 4*(i & 1); t = S + i
        A(f"v_mov_b32_dpp v{t}, v{d} quad_perm:[0,0,0,0] {DPPF}\nv_mov_b32_dpp v55, v{d+2} quad_perm:[2,2,2,2] {DPPF}\ns_nop 0")
        A(f"v_add_f32_dpp v{t}, v{d+1}, v{t} quad_perm:[1,1,1,1] {DPPF}\nv_add_f32_dpp v55, v{d+3}, v55 quad_perm:[3,3,3,3] {DPPF}")
        A(f"v_add_f32 v{t}, v{t}, v55")
        if i & 1:
            a, b = t-1, t
            A(f"v_cvt_pk_bf16_f32 v56, v{a}, v{b}\nv_lshlrev_b32 v{a}, 16, v56\nv_and_b32 v{b}, 0xffff0000, v56")
            A(f"v_mul_f32 v{a}, s60, v{a}\nv_mul_f32 v{b}, s60, v{b}")
            A(f"v_cvt_pk_bf16_f32 v56, v{a}, v{b}\nv_lshlrev_b32 v{a}, 16, v56\nv_and_b32 v{b}, 0xffff0000, v56")
            A(f"v_max3_f32 v52, v52, v{a}, v{b}")
    since = [0]; DD = DY if DY else (D if DV is None else DV)
    assert DD <= 8
    def after_consume(k):
        since[0] += 1
        while issued[0] < (NT + DD if dyn else NT) and issued[0] - R <= k:
            lag = issued[0] - (k+1)
            Dk = D if issued[0] < NU or DV is None else DV
            Dk = int(Dk*(k+1) + 1e-9) - int(Dk*k + 1e-9)
            if dyn and issued[0] >= NT - 4: Dk = DD
            if lag < Dk: issue_unit(); since[0] = 0
            elif since[0] >= cu:
                A(f"s_waitcnt vmcnt({Dk-1})"); issue_unit(); since[0] = 0; break
            else: break
    for k in range(NU):
        i, a = divmod(k, 4); d = 32 + 4*(i & 1)
        A(f"s_waitcnt vmcnt({issued[0]-k-1})")
        c = "0" if a == 0 else vr(d)
        A(f"v_mfma_f32_16x16x32_bf16 {vr(d)}, {vr(RING+4*(k%R))}, {vr(16+4*a)}, {c}")
        after_consume(k)
        if a == 3 and i > 0: post(i-1)
    A("s_nop 7")
    post(NS-1)
    stamp(3)
    for c in ("row_ror:4 "+DPPF, "row_ror:8 "+DPPF, "row_bcast:15 row_mask:0xa bank_mask:0xf", "row_bcast:31 row_mask:0xc bank_mask:0xf"):
        A(f"s_nop 1\nv_max_f32_dpp v52, v52, v52 {c}")
    A("s_nop 0\nv_readlane_b32 s62, v52, 63\ns_nop 1\nv_mov_b32 v54, s62\nv_mul_f32 v54, s61, v54")
    def expo(i):
        A(f"v_fma_f32 v{S+i}, v{S+i}, s61, -v54\nv_fma_f32 v{S+i+1}, v{S+i+1}, s61, -v54")
        A(f"v_exp_f32 v{S+i}, v{S+i}\nv_exp_f32 v{S+i+1}, v{S+i+1}\ns_nop 0")
        A(f"v_add_f32 v53, v53, v{S+i}\nv_cvt_pk_bf16_f32 v{S+i}, v{S+i}, v{S+i}")
        A(f"v_add_f32 v53, v53, v{S+i+1}\nv_cvt_pk_bf16_f32 v{S+i+1}, v{S+i+1}, v{S+i+1}")
    expo(0)
    A("s_nop 1")
    def ands(k):
        i, a = divmod(k, 4); o = 44 + 4*(k & 1)
        for w in range(4): A(f"v_and_b32_dpp v{o+w}, v{S+i}, v{12+w} row_newbcast:{4*a} {DPPF}")
    ands(0)
    for k in range(NU):
        i, a = divmod(k, 4); n = NU + k; o = 44 + 4*(k & 1)
        if k % 8 == 2 and i + 2 < NS: expo(i + 2)
        if dyn and k == NU - DD - X0:
            A(f"s_mov_b32 s41, {AH-1}\nv_mov_b32 v56, s41\nds_write_b32 v58, v56 offset:{PR}")
        if k + 1 < NU: ands(k+1)
        else: A("s_nop 1")
        A(f"s_waitcnt vmcnt({issued[0]-n-1})")
        c = "0" if k == 0 else vr(40)
        A(f"v_mfma_f32_16x16x32_bf16 {vr(40)}, {vr(o)}, {vr(RING+4*(n%R))}, {c}")
        after_consume(n)
    stamp(9)
    if dyn:
        A("s_cmp_eq_u32 s38, 0\ns_cbranch_scc1 L_dynd")
        A("L_dyn:")
        for b in range(2):
            cur, nxt = ("s40", "s50") if b == 0 else ("s50", "s40")
            def step(pos):
                q = pos + DD
                if q == 8: get_claim(nxt, f"b{b}")
                issue_dyn(8*b + q, cur if q < 8 else nxt)
            for pos in range(4):
                A(f"s_waitcnt vmcnt({DD-1})")
                A(f"v_mfma_f32_16x16x32_bf16 v[32:35], {vr(dslot(8*b+pos))}, {vr(16+4*pos)}, {'0' if pos == 0 else 'v[32:35]'}")
                step(pos)
            A("s_nop 6")
            A(f"v_mov_b32_dpp v60, v32 quad_perm:[0,0,0,0] {DPPF}\nv_mov_b32_dpp v55, v34 quad_perm:[2,2,2,2] {DPPF}\ns_nop 0")
            A(f"v_add_f32_dpp v60, v33, v60 quad_perm:[1,1,1,1] {DPPF}\nv_add_f32_dpp v55, v35, v55 quad_perm:[3,3,3,3] {DPPF}")
            A("v_add_f32 v60, v60, v55\nv_cvt_pk_bf16_f32 v60, v60, v60\nv_lshlrev_b32 v60, 16, v60\nv_mul_f32 v60, s60, v60\nv_cvt_pk_bf16_f32 v60, v60, v60\nv_lshlrev_b32 v60, 16, v60")
            A(f"s_nop 1\nv_max_f32_dpp v61, v60, v60 row_ror:4 {DPPF}")
            for c in ("row_ror:8 "+DPPF, "row_bcast:15 row_mask:0xa bank_mask:0xf", "row_bcast:31 row_mask:0xc bank_mask:0xf"):
                A(f"s_nop 1\nv_max_f32_dpp v61, v61, v61 {c}")
            A("s_nop 0\nv_readlane_b32 s62, v61, 63\ns_nop 1\nv_mov_b32 v61, s62\nv_mul_f32 v61, s61, v61\nv_max_f32 v61, v61, v54")
            A("v_sub_f32 v62, v54, v61\nv_fma_f32 v60, v60, s61, -v61\nv_exp_f32 v62, v62\nv_exp_f32 v60, v60\nv_mov_b32 v54, v61")
            A("v_fma_f32 v53, v53, v62, v60\nv_cvt_pk_bf16_f32 v60, v60, v60")
            for r in range(4): A(f"v_mul_f32 v{40+r}, v{40+r}, v62")
            def dands(a):
                o = 44 + 4*(a & 1)
                for w in range(4): A(f"v_and_b32_dpp v{o+w}, v60, v{12+w} row_newbcast:{4*a} {DPPF}")
            dands(0)
            for pos in range(4, 8):
                a = pos - 4
                if a < 3: dands(a+1)
                else: A("s_nop 1")
                A(f"s_waitcnt vmcnt({DD-1})")
                A(f"v_mfma_f32_16x16x32_bf16 v[40:43], {vr(44+4*(a&1))}, {vr(dslot(8*b+pos))}, v[40:43]")
                step(pos)
            A(f"s_cmp_eq_u32 s38, 0")
            A("s_cbranch_scc1 L_dynd" if b == 0 else "s_cbranch_scc0 L_dyn")
        A("L_dynd:")
    for c in ("row_ror:4 "+DPPF, "row_ror:8 "+DPPF, "row_bcast:15 row_mask:0xa bank_mask:0xf", "row_bcast:31 row_mask:0xc bank_mask:0xf"):
        A(f"s_nop 1\nv_add_f32_dpp v53, v53, v53 {c}")
    A(f"s_mov_b32 exec_lo, 0\ns_mov_b32 exec_hi, 0x80000000\nds_write_b32 v58, v54 offset:{ML4}\nds_write_b32 v58, v53 offset:{ML4+16}\ns_mov_b64 exec, -1")
    A(f"ds_write_b128 v57, v[40:43] offset:{OP}\ns_waitcnt lgkmcnt(0)")
    stamp(4)
    A("s_barrier")
    final_setup()
    A("s_branch L_final")
    A(f""".section .rodata,"a"
.p2align 6
.amdhsa_kernel {NAME}
  .amdhsa_next_free_vgpr 256
  .amdhsa_next_free_sgpr 100
  .amdhsa_accum_offset 256
  .amdhsa_group_segment_fixed_size 0
  .amdhsa_kernarg_size 96
  .amdhsa_user_sgpr_count 2
  .amdhsa_user_sgpr_kernarg_segment_ptr 1
  .amdhsa_system_sgpr_workgroup_id_x 1
.end_amdhsa_kernel""")
    return HEADER + "\n".join(L) + "\n"

if __name__ == "__main__":
    kw = eval("dict(" + (sys.argv[2] if len(sys.argv) > 2 else "") + ")")
    s = gen(**kw)
    open(sys.argv[1], "w").write(s)
    import hazard
    pr = hazard.check(s)
    print("\n".join(pr) if pr else "no hazards")
```

```python
import sys
NAME = "parallel_sum__mha_block_cached__glu_gated_bilinear__decode_kernel"
HEADER = open('parallel_sum__mha_block_cached__glu_gated_bilinear__decode.s.ref').read().split('; Override launch')[0]
QL, FIN, ML4, WF, PR, LV, YB = 0, 256, 512, 576, 640, 672, 1024
OP = YB + 5*1024
LDS_BYTES = OP + 2048
PA, GUG, OX, MLG, QX, EPOCH, STAMP = 0, 0x90000, 0xe0000, 0x160000, 0x170000, 0x190004, 0x300000
FBL, LVG = 0x1a0000, 0x1b0000
LOG2E, SCALE, EPS, INV576 = 0x3fb8aa3b, 0x3db504f3, 0x3727c5ac, 0x3ae38e39
DPPF = "row_mask:0xf bank_mask:0xf"
RED8 = ("quad_perm:[1,0,3,2]", "quad_perm:[2,3,0,1]", "row_half_mirror")
RED16 = ("row_ror:1", "row_ror:2", "row_ror:4", "row_ror:8")
WT = " sc0 sc1"

def gen(R=40, R0=36, P=5, D=5, DV=5.5, cu=2, hD=3, woD=2, kvfl="nt", wfl="nt", stamps=False, grot=1, psleep=0, gsleep=64, osleep=1,
        kml=40, kwf=112, fine=(), qwait=24, diag=(), barD=True, dry=True, local=True, ldl=" sc1", qlocal=False, qto=12, fb=tuple(range(48,240,16)), Dhi=7, Dlo=4, L0=20, G=6, Linit=21, lsleep=32, kpre=None, ofirst=3, pfirst=0, NPO=1, NPA=1, pgap=2, ogap=1, GX=0, X0=0, omerge=True, pld=WT, qld=WT, lfast=' nt'):
    L = []
    def A(s): L.extend(s.split("\n"))
    def fl(x): return (" " + x) if x else ""
    def stamp(i):
        if stamps: A(f"s_memrealtime s[{64+2*i}:{65+2*i}]")
    def vr(b, n=4): return f"v[{b}:{b+n-1}]"
    uid = [0]
    def lab(p):
        uid[0] += 1; return f"L_{p}{uid[0]}"
    def wave_reduce(op, v):
        for c in tuple(x+" "+DPPF for x in RED16) + ("row_bcast:15 row_mask:0xa bank_mask:0xf", "row_bcast:31 row_mask:0xc bank_mask:0xf"):
            A(f"s_nop 1\n{op}_dpp v{v}, v{v}, v{v} {c}")
    def masks():
        A("v_and_b32 v3, 1, v10\nv_lshlrev_b32 v3, 4, v3\nv_mov_b32 v4, 0xffff\nv_lshlrev_b32 v4, v3, v4\nv_bfe_u32 v3, v10, 1, 2")
        for w in range(4):
            A(f"v_cmp_eq_u32 vcc, {w}, v3\ns_nop 1\nv_cndmask_b32 v{12+w}, 0, v4, vcc")
    def epoch_load():
        A(f"s_add_u32 s48, s26, {EPOCH}\ns_addc_u32 s49, s27, 0\ns_load_dword s63, s[48:49], 0")
    def epoch_use():
        A(f"s_add_u32 s63, s63, 9\ns_and_b32 s43, s63, 0x3ff\ns_mov_b32 s51, 0xfffffc00\ns_and_b32 s96, s63, 0xff\ns_mov_b32 s97, 0xffffff00")
    def tag(r, vt, bits=10): A(f"v_and_or_b32 v{r}, v{r}, {'s51' if bits == 10 else 's97'}, v{vt}")
    def ortree(regs, t):
        A(f"v_or3_b32 v{t}, v{regs[0]}, v{regs[1]}, v{regs[2]}")
        rest = regs[3:]
        while len(rest) >= 2: A(f"v_or3_b32 v{t}, v{t}, v{rest[0]}, v{rest[1]}"); rest = rest[2:]
        if rest: A(f"v_or_b32 v{t}, v{t}, v{rest[0]}")
    def check(regs, t, bits=10):
        for r in regs: A(f"v_xor_b32 v{r}, {'s43' if bits == 10 else 's96'}, v{r}")
        ortree(regs, t)
        A(f"v_and_b32 v{t}, {(1 << bits) - 1:#x}, v{t}\nv_cmp_ne_u32 vcc, 0, v{t}")
    def loop(l): A(f"s_sub_u32 s94, s94, 1\ns_cbranch_scc0 {l}")
    def ppoll(lb, NP, addrs, canon, base, flv, gap, tmp):
        n = len(addrs)
        def iss(k):
            for a in range(n): A(f"global_load_dwordx4 {vr(base + 4*(n*k + a))}, v{addrs[a]}, s[26:27]{flv}")
        A("s_mov_b64 s[56:57], exec")
        for k in range(NP - 1):
            iss(k)
            if gap: A(f"s_sleep {gap}")
        A(f"{lb}:")
        for k in range(NP):
            iss((k + NP - 1) % NP)
            A(f"s_waitcnt vmcnt({n*(NP-1)})")
            b = base + 4*n*k
            check(list(range(b, b + 4*n)), tmp)
            A("s_andn2_b64 exec, exec, vcc")
            for r in range(4*n): A(f"v_mov_b32 v{canon+r}, v{b+r}")
            A(f"s_and_b64 s[56:57], s[56:57], vcc\ns_mov_b64 exec, s[56:57]\ns_cbranch_execz {lb}d")
            if gap: A(f"s_sleep {gap}")
        loop(lb)
        A(f"{lb}d:"); exall()
    def store2(flag, insns):
        if not local:
            for i in insns: A(i + WT)
            return
        a, b = lab("sw"), lab("sd")
        A(f"s_cmp_eq_u32 {flag}, 0\ns_cbranch_scc1 {a}")
        for i in insns: A(i)
        A(f"s_branch {b}\n{a}:")
        for i in insns: A(i + WT)
        A(f"{b}:")
    def load2(flag, insns):
        a, b = lab("lw"), lab("ld")
        A(f"s_cmp_eq_u32 {flag}, 0\ns_cbranch_scc1 {a}")
        for i in insns: A(i + lfast)
        A(f"s_branch {b}\n{a}:")
        for i in insns: A(i + " sc1")
        A(f"{b}:")
    def hands(src, o, bc=None):
        for w in range(4):
            if bc is None: A(f"v_and_b32 v{o+w}, v{src}, v{12+w}")
            else: A(f"v_and_b32_dpp v{o+w}, v{src}, v{12+w} row_newbcast:{bc} {DPPF}")
    def norm(r):
        A(f"v_lshlrev_b32 v{r}, 16, v{r}\nv_sub_f32 v{r}, v{r}, v45\nv_cvt_pk_bf16_f32 v{r}, v{r}, v{r}\nv_lshlrev_b32 v{r}, 16, v{r}\nv_mul_f32 v{r}, v{r}, v46\nv_cvt_pk_bf16_f32 v{r}, v{r}, v{r}")
    def layernorm():
        for k in range(8):
            A(f"v_lshlrev_b32 v{28+2*k}, 16, v{16+k}\nv_and_b32 v{29+2*k}, 0xffff0000, v{16+k}")
        for k in range(8): A(f"v_add_f32 v{48+k}, v{28+k}, v{36+k}")
        for st in (4, 2):
            for k in range(st): A(f"v_add_f32 v{48+k}, v{48+k}, v{48+k+st}")
        A("v_add_f32 v44, v48, v49")
        wave_reduce("v_add_f32", 44)
        A(f"s_nop 0\nv_readlane_b32 s40, v44, 63\ns_nop 1\nv_mov_b32 v45, s40\nv_mul_f32 v45, {INV576:#x}, v45")
        for k in range(16): A(f"v_sub_f32 v{48+k}, v{28+k}, v45")
        A("v_mul_f32 v44, v48, v48\nv_mul_f32 v47, v49, v49")
        for k in range(2, 8, 2): A(f"v_fmac_f32 v44, v{48+k}, v{48+k}\nv_fmac_f32 v47, v{49+k}, v{49+k}")
        A("s_mov_b64 exec, 0xff")
        for k in range(8, 16, 2): A(f"v_fmac_f32 v44, v{48+k}, v{48+k}\nv_fmac_f32 v47, v{49+k}, v{49+k}")
        A("s_mov_b64 exec, -1\nv_add_f32 v44, v44, v47")
        wave_reduce("v_add_f32", 44)
        A(f"s_nop 0\nv_readlane_b32 s40, v44, 63\ns_nop 1\nv_mov_b32 v46, s40\nv_mul_f32 v46, {INV576:#x}, v46")
        A(f"v_cvt_pk_bf16_f32 v46, v46, v46\nv_lshlrev_b32 v46, 16, v46\nv_add_f32 v46, {EPS:#x}, v46")
        A("v_cvt_pk_bf16_f32 v46, v46, v46\nv_lshlrev_b32 v46, 16, v46\nv_sqrt_f32 v46, v46\ns_nop 0")
        A("v_cvt_pk_bf16_f32 v46, v46, v46\nv_lshlrev_b32 v46, 16, v46\nv_rcp_f32 v46, v46")
        A("v_cvt_pk_bf16_f32 v45, v45, v45\nv_lshlrev_b32 v45, 16, v45")
    def xload():
        A("s_mul_i32 s40, s30, 144\nv_lshl_add_u32 v2, v11, 1, s40\nv_lshl_add_u32 v2, v10, 3, v2")
        A("s_mov_b32 s36, s4\ns_mov_b32 s37, s5\ns_mov_b32 s38, 1152\ns_mov_b32 s39, 0x20000")
        A("buffer_load_dwordx4 v[16:19], v1, s[36:39], 0 offen\nbuffer_load_dwordx4 v[20:23], v1, s[36:39], 0 offen offset:1024")
        A("buffer_load_ushort v24, v2, s[36:39], 0 offen\nbuffer_load_ushort v25, v2, s[36:39], 0 offen offset:128")
    def owntag(dst):
        A(f"s_getreg_b32 {dst}, hwreg(HW_REG_XCC_ID)\ns_and_b32 {dst}, {dst}, 7\ns_and_b32 s40, s63, 0xf8\ns_or_b32 {dst}, {dst}, s40")
    BIG = 112; AOP = 80
    def ex(lo, hi): A(f"s_and_b32 exec_lo, s98, {lo}\ns_and_b32 exec_hi, s98, {hi}")
    def exall(): A("s_mov_b64 exec, s[98:99]")
    OSRD = "s[84:87]" if not stamps else "s[52:55]"
    def final_setup():
        o = 84 if not stamps else 52
        A(f"v_and_b32 v73, 31, v0\ns_lshl_b32 s40, s28, 5\nv_add_u32 v73, s40, v73")
        A(f"v_lshrrev_b32 v74, 5, v0\nv_mul_u32_u24 v68, 2304, v73\nv_lshl_add_u32 v68, v74, 4, v68\ns_min_u32 s41, s2, 71\ns_lshl_b32 s40, s41, 5\nv_add_u32 v68, s40, v68")
        A(f"s_lshl_b32 s40, s41, 4\nv_lshl_add_u32 v69, v0, 1, s40\nv_lshlrev_b32 v70, 2, v0\ns_lshl_b32 s40, s28, 5\nv_lshl_add_u32 v71, v74, 4, s40")
        A(f"s_mov_b32 s36, s4\ns_mov_b32 s37, s5\ns_mov_b32 s38, 1152\ns_mov_b32 s39, 0x20000\ns_mov_b32 s{o}, s22\ns_mov_b32 s{o+1}, s23\ns_mov_b32 s{o+2}, 1152\ns_mov_b32 s{o+3}, 0x20000")
        A("buffer_load_ushort v72, v69, s[36:39], 0 offen\ns_mov_b32 s98, -1\ns_mov_b32 s99, -1")
    def final():
        A("L_final:")
        A(f"s_cmp_ge_u32 s2, 72\ns_cbranch_scc1 L_fin0")
        if barD: A("s_cmp_eq_u32 s98, 0\ns_cbranch_scc1 L_pa\ns_barrier")
        A("L_pa:")
        if pfirst: A(f"s_sleep {pfirst}")
        if NPA > 1: ppoll("L_pp", NPA, [68], 76, 52, WT, pgap, 73)
        else:
            A(f"L_pa1:\nglobal_load_dwordx4 v[76:79], v68, s[26:27]{pld}\ns_waitcnt vmcnt(0)")
            check([76, 77, 78, 79], 73)
            A(f"s_and_b64 exec, exec, vcc\ns_cbranch_execz L_da")
            if psleep: A(f"s_sleep {psleep}")
            loop(f"L_pa1")
            A(f"L_da:"); exall()
        stamp(11)
        for c in tuple(x+" "+DPPF for x in RED16) + ("row_bcast:15 row_mask:0xa bank_mask:0xf",):
            for r in range(4): A(f"v_add_f32_dpp v{76+r}, v{76+r}, v{76+r} {c}")
        ex("0x80000000", "0x80000000")
        A(f"ds_write_b128 v71, v[76:79] offset:{FIN}\ns_waitcnt lgkmcnt(0)\ns_cmp_eq_u32 s98, 0\ns_cbranch_scc1 L_out\ns_barrier")
        stamp(12)
        A(f"s_cmp_lg_u32 s28, 0\ns_cbranch_scc1 L_ep")
        A("L_out:"); ex("0xff", "0")
        if NPA > 1: A("s_nop 0")
        for v in range(4): A(f"ds_read2_b32 v[{32+2*v}:{33+2*v}], v70 offset0:{FIN//4+16*v} offset1:{FIN//4+16*v+8}")
        A("v_lshlrev_b32 v72, 16, v72\ns_waitcnt lgkmcnt(0)")
        for st in (4, 2, 1):
            for k in range(st): A(f"v_add_f32 v{32+k}, v{32+k}, v{32+k+st}")
        A("v_add_f32 v32, v72, v32\nv_cvt_pk_bf16_f32 v32, v32, v32")
        A(f"buffer_store_short v32, v69, {OSRD}, 0 offen")
        A("L_fin0:")
        if dry: A("s_cmp_eq_u32 s98, 0\ns_cbranch_scc1 L_real")
        A("s_branch L_fin\nL_ep:")
        A(f"s_cmp_lg_u32 s2, 0\ns_cbranch_scc1 L_fin\ns_cmp_lg_u32 s28, 4\ns_cbranch_scc1 L_fin")
        A(f"s_mov_b64 exec, 1\nv_mov_b32 v3, {EPOCH:#x}\nv_mov_b32 v4, s63\nglobal_store_dword v3, v4, s[26:27]{WT}")
        A(f"L_fin:")
        if stamps:
            A("s_waitcnt vmcnt(0)\ns_memrealtime s[90:91]\ns_getreg_b32 s92, hwreg(HW_REG_XCC_ID)\ns_mov_b32 s93, 0\ns_waitcnt lgkmcnt(0)")
            A(f"s_lshl_b32 s40, s2, 3\ns_add_u32 s40, s40, s28\ns_lshl_b32 s40, s40, 7\ns_add_u32 s40, s40, {STAMP}\ns_mov_b64 exec, 1\nv_mov_b32 v6, s40")
            for i in range(15):
                A(f"v_mov_b32 v8, s{64+2*i}\nv_mov_b32 v9, s{65+2*i}\nglobal_store_dwordx2 v6, v[8:9], s[26:27] offset:{8*i}")
        if "dbg" in diag:
            A("s_mov_b64 exec, 1\nv_mov_b32 v6, 0\ns_not_b32 s40, s64\nv_mov_b32 v8, s40\nglobal_atomic_umax v6, v8, s[24:25] sc1\nv_mov_b32 v8, s64\nglobal_atomic_umax v6, v8, s[24:25] offset:4 sc1\nv_mov_b32 v8, s90\nglobal_atomic_umax v6, v8, s[24:25] offset:8 sc1")
            A("s_cmp_lt_u32 s28, 4\ns_cbranch_scc0 L_end\nv_mov_b32 v8, s72\nglobal_atomic_umax v6, v8, s[24:25] offset:12 sc1\ns_not_b32 s40, s72\nv_mov_b32 v8, s40\nglobal_atomic_umax v6, v8, s[24:25] offset:16 sc1\nv_mov_b32 v8, s70\nglobal_atomic_umax v6, v8, s[24:25] offset:20 sc1\nv_mov_b32 v8, s68\nglobal_atomic_umax v6, v8, s[24:25] offset:24 sc1")
        A(f"L_end:\ns_endpgm")

    A(f"; @launch grid=(256,1,1) block=(512,1,1) lds={LDS_BYTES}")
    A('.amdgcn_target "amdgcn-amd-amdhsa--gfx950"\n.text')
    A(f".globl {NAME}\n.p2align 8\n.type {NAME},@function\n{NAME}:")
    stamp(0)
    A("s_cmp_ge_u32 s2, 256\ns_cbranch_scc1 L_end")
    A("s_load_dwordx16 s[4:19], s[0:1], 0\ns_load_dwordx8 s[20:27], s[0:1], 64")
    A("v_lshrrev_b32 v1, 6, v0\nv_and_b32 v0, 63, v0")
    A("s_and_b32 s33, s2, 7\ns_lshr_b32 s34, s2, 3")
    A("v_readfirstlane_b32 s28, v1")
    A("s_lshl_b32 s31, s33, 5\ns_add_u32 s31, s31, s34\ns_lshr_b32 s29, s31, 3\ns_and_b32 s30, s31, 7")
    A("v_lshrrev_b32 v11, 4, v0\nv_and_b32 v10, 15, v0")
    A("s_mov_b32 s94, 0x40000\ns_cmp_lt_u32 s28, 4\ns_cbranch_scc0 L_hstart")
    RING = 256 - 4*R
    assert RING >= 92 and R % 4 == 0 and R0 <= R
    A("v_bfe_u32 v1, v0, 2, 2\nv_lshlrev_b32 v1, 8, v1\nv_lshl_add_u32 v1, v11, 6, v1\nv_and_b32 v3, 3, v0\nv_lshl_add_u32 v1, v3, 4, v1")
    A(f"s_lshl_b32 s40, s29, 22")
    A(f"s_mul_i32 s50, s29, {grot*0x20000}\ns_lshl_b32 s41, s30, 14\ns_add_u32 s50, s50, s41\ns_lshl_b32 s41, s28, 12\ns_add_u32 s50, s50, s41\ns_and_b32 s50, s50, 0x3fffff")
    A("s_mov_b32 s38, 0x400000\ns_mov_b32 s39, 0x20000\ns_mov_b32 s46, 0x400000\ns_mov_b32 s47, 0x20000")
    A("s_waitcnt lgkmcnt(0)")
    A("s_add_u32 s36, s6, s40\ns_addc_u32 s37, s7, 0\ns_add_u32 s44, s8, s40\ns_addc_u32 s45, s9, 0")
    issued = [0]
    def issue_unit():
        n = issued[0]; a = n % 4
        A(f"buffer_load_dwordx4 {vr(RING + 4*(n % R))}, {'v1' if n < 128 else 'v2'}, {'s[36:39]' if n < 128 else 's[44:47]'}, s50 offen offset:{1024*a}{fl(kvfl)}")
        if a == 3: A("s_add_u32 s50, s50, 0x20000\ns_and_b32 s50, s50, 0x3fffff")
        issued[0] += 1
        if issued[0] in fine: stamp(5 + list(fine).index(issued[0]))
    for n in range(min(P, R0)): issue_unit()
    epoch_load()
    A("s_branch L_s2")

    A("L_hstart:")
    A("s_sub_u32 s35, s28, 4\nv_lshlrev_b32 v1, 4, v0\nv_and_b32 v8, 7, v10")
    A("s_cmp_eq_u32 s35, 0\ns_cbranch_scc0 L_h123")
    A("s_mul_i32 s40, s30, 589824\ns_lshl_b32 s41, s29, 8\ns_add_u32 s40, s40, s41")
    A("v_lshlrev_b32 v7, 13, v11\nv_lshl_add_u32 v7, v10, 4, v7\nv_add_u32 v7, s40, v7")
    A("s_mov_b32 s46, 4718592\ns_mov_b32 s47, 0x20000\ns_mov_b32 s42, 0")
    A("s_waitcnt lgkmcnt(0)")
    xload()
    A("s_mov_b32 s44, s10\ns_mov_b32 s45, s11")
    for u in range(18):
        A(f"buffer_load_dwordx4 {vr(BIG+4*u)}, v7, s[44:47], s42 offen{fl(wfl)}")
        if u < 17: A("s_add_u32 s42, s42, 0x8000")
    epoch_load()
    stamp(1)
    masks()
    A(f"v_lshlrev_b32 v5, 5, v10\nv_lshl_add_u32 v5, v11, 4, v5\ns_lshl_b32 s40, s31, 9\ns_add_u32 s40, s40, {QX}\nv_add_u32 v5, s40, v5")
    A(f"s_lshl_b32 s40, s29, 12\ns_add_u32 s40, s40, {QX}\nv_add_u32 v6, s40, v1")
    if fb is not None: A(f"v_mov_b32 v9, 0\nv_mov_b32 v3, -1\nds_write_b32 v9, v3 offset:{PR}\nv_mov_b32 v3, {Linit}\nds_write_b32 v9, v3 offset:{LV}")
    A("s_waitcnt vmcnt(20)")
    layernorm()
    A("s_waitcnt vmcnt(18) lgkmcnt(0)")
    epoch_use()
    for t in range(2): norm(24+t)
    stamp(2)
    owntag("s58")
    A("v_mov_b32 v27, s58")
    hands(24, AOP, 0)
    for u in range(18):
        if u + 1 < 18: hands(24 + ((u+1) >> 4), AOP + 4*((u+1) & 1), (u+1) & 15)
        else: A("s_nop 1")
        A(f"s_waitcnt vmcnt({17-u})")
        c = "0" if u == 0 else vr(64)
        A(f"v_mfma_f32_16x16x32_bf16 {vr(64)}, {vr(AOP+4*(u&1))}, {vr(BIG+4*u)}, {c}")
    A("s_mov_b32 exec_hi, 0\ns_nop 6")
    for r in range(4): tag(64+r, 27, 8)
    A(f"global_store_dwordx4 v5, v[64:67], s[26:27]{'' if qlocal else WT}\ns_mov_b64 exec, -1\ns_mov_b32 s41, {qto}")
    stamp(3)
    if qwait: A(f"s_sleep {qwait}")
    A("L_qpoll:")
    for p in range(4): A(f"global_load_dwordx4 {vr(BIG+4*p)}, v6, s[26:27] offset:{1024*p}{ldl if qlocal else qld}")
    A("s_waitcnt vmcnt(0)")
    for r in range(BIG, BIG+16): A(f"v_xor_b32 v{r}, s58, v{r}")
    ortree(list(range(BIG, BIG+16)), 3)
    A("v_and_b32 v4, 0xf8, v3\nv_cmp_ne_u32 vcc, 0, v4\ns_cbranch_vccz L_qdone")
    if qlocal: A("s_sleep 4\ns_sub_u32 s41, s41, 1\ns_cmp_lg_u32 s41, 0\ns_cbranch_scc1 L_qpoll2\nbuffer_wbl2 sc1\ns_waitcnt vmcnt(0)\nL_qpoll2:")
    loop("L_qpoll")
    A("L_qdone:\nv_and_b32 v4, 7, v3\nv_cmp_ne_u32 vcc, 0, v4")
    for r in range(BIG, BIG+16): A(f"v_and_b32 v{r}, s97, v{r}")
    A("s_cmp_eq_u64 vcc, 0\ns_cselect_b32 s40, 1, 0")
    for r in range(4): A(f"v_add_f32 v{BIG+r}, v{BIG+r}, v{BIG+4+r}\nv_add_f32 v{BIG+8+r}, v{BIG+8+r}, v{BIG+12+r}")
    for r in range(4): A(f"v_add_f32 v{BIG+r}, v{BIG+r}, v{BIG+8+r}")
    for r in range(4): A(f"v_mov_b32 v{BIG+4+r}, v{BIG+r}")
    A("v_and_b32 v4, 31, v0\nv_lshlrev_b32 v4, 3, v4")
    for r in range(4): A(f"v_permlane32_swap_b32 v{BIG+4+r}, v{BIG+r}")
    for r in range(4): A(f"v_add_f32 v{BIG+r}, v{BIG+4+r}, v{BIG+r}")
    A(f"v_cvt_pk_bf16_f32 v{BIG+8}, v{BIG}, v{BIG+1}\nv_cvt_pk_bf16_f32 v{BIG+9}, v{BIG+2}, v{BIG+3}\nds_write_b64 v4, v[{BIG+8}:{BIG+9}] offset:{QL}")
    A(f"v_mov_b32 v3, s40\nv_mov_b32 v4, 0\nds_write_b32 v4, v3 offset:{WF+32}\ns_waitcnt lgkmcnt(0)")
    stamp(4)
    A("s_barrier")
    if fb:
        A(f"v_mov_b32 v9, 0\ns_lshl_b32 s40, s33, 8\ns_add_u32 s40, s40, {FBL}\nv_lshl_add_u32 v5, v0, 2, s40\ns_add_u32 s46, s40, 128\nv_mov_b32 v7, s46\ns_lshl_b32 s42, s34, 2\ns_add_u32 s40, s40, s42\nv_mov_b32 v6, s40")
        A(f"s_lshl_b32 s40, s33, 7\ns_add_u32 s40, s40, {LVG}\nv_mov_b32 v26, s40\nv_lshlrev_b32 v2, 7, v0\nv_add_u32 v2, {LVG:#x}, v2")
        A(f"s_mov_b32 s41, 0\ns_lshl_b32 s44, s63, 5")
        A(f"L_fb:\nds_read_b32 v3, v9 offset:{PR}\ns_waitcnt lgkmcnt(0)\nv_readfirstlane_b32 s40, v3\ns_cmp_ge_i32 s40, s41\ns_cbranch_scc1 L_fb2\ns_sleep 4")
        A("s_sub_u32 s94, s94, 1\ns_cbranch_scc0 L_fb\ns_branch L_hC")
        A(f"L_fb2:\ns_add_u32 s45, s44, s41\nv_mov_b32 v4, s45\ns_mov_b32 exec_hi, {1 if GX else 0}\nglobal_load_dword v3, v5, s[26:27] nt\ns_mov_b64 exec, 1\nglobal_store_dword v6, v4, s[26:27]")
        A(f"s_mov_b32 exec_lo, -1\ns_waitcnt vmcnt(1)")
        if GX: A(f"v_readlane_b32 s46, v3, 32\ns_sub_u32 s46, s46, s44\ns_cmp_lt_u32 s46, 32\ns_cselect_b32 s46, s46, {X0}")
        A(f"v_sub_u32 v3, v3, v4\nv_cmp_gt_u32 vcc, 32, v3\ns_bcnt1_i32_b64 s42, vcc\ns_mov_b64 exec, 1")
        A(f"s_mul_i32 s40, s42, {G}\ns_lshr_b32 s40, s40, 5\ns_add_u32 s40, s40, {L0}")
        if GX: A("s_add_u32 s40, s40, s46")
        A(f"v_mov_b32 v3, s40\nds_write_b32 v9, v3 offset:{LV}")
        if GX:
            A(f"s_sub_u32 s42, s42, 15\ns_cmp_lt_u32 s42, 2\ns_cbranch_scc0 L_fb3")
            A(f"s_mov_b64 exec, 0xff\nglobal_load_dword v3, v2, s[26:27]{WT}\ns_mov_b64 exec, 1\nglobal_store_dword v26, v4, s[26:27]{WT}\ns_mov_b64 exec, 0xff\ns_waitcnt vmcnt(1)")
            A(f"v_sub_u32 v3, v3, v4\nv_cmp_gt_u32 vcc, 32, v3\ns_bcnt1_i32_b64 s42, vcc\ns_min_u32 s42, s42, 7\ns_mul_i32 s42, s42, {GX}\ns_lshr_b32 s42, s42, 3\ns_add_u32 s42, s42, s44\ns_mov_b64 exec, 1\nv_mov_b32 v3, s42\nglobal_store_dword v7, v3, s[26:27]\nL_fb3:")
        A(f"s_mov_b64 exec, -1\ns_add_u32 s41, s41, 1\ns_cmp_lt_u32 s41, {len(fb)}\ns_cbranch_scc1 L_fb")
    A("s_branch L_hC")
    A("L_h123:")
    A("s_waitcnt lgkmcnt(0)")
    epoch_load()
    A("s_cmp_eq_u32 s35, 3\ns_cbranch_scc1 L_h3")
    A("s_and_b32 s56, s29, 3\ns_mov_b32 s57, 1\nv_mov_b32 v9, v10\ns_cmp_eq_u32 s35, 1\ns_cbranch_scc1 L_gu")
    A("s_cmp_eq_u32 s56, 0\ns_mov_b32 s56, 4\ns_mov_b32 s57, 0\nv_mov_b32 v9, v8\ns_cbranch_scc1 L_gu")
    masks()
    A("s_waitcnt lgkmcnt(0)"); epoch_use()
    A("s_barrier\ns_branch L_hC")
    A("L_gu:")
    xload()
    masks()
    A(f"s_waitcnt vmcnt(2)")
    layernorm()
    A(f"s_waitcnt vmcnt(0) lgkmcnt(0)")
    epoch_use()
    for t in range(2): norm(24+t)
    A("s_barrier")
    A("s_mul_i32 s40, s33, 1152\ns_lshl_b32 s41, s56, 8\ns_add_u32 s40, s40, s41")
    A("s_add_u32 s44, s16, s40\ns_addc_u32 s45, s17, 0\ns_sub_u32 s46, 5308416, s40\ns_mov_b32 s47, 0x20000")
    A("s_add_u32 s52, s18, s40\ns_addc_u32 s53, s19, 0\ns_mov_b32 s54, s46\ns_mov_b32 s55, 0x20000")
    A("s_mul_i32 s40, s30, 663552\ns_mov_b32 s42, 9216\nv_mul_lo_u32 v6, v11, s42\nv_lshl_add_u32 v6, v9, 4, v6\nv_add_u32 v6, s40, v6")
    def gu_issue(k):
        u, mat = divmod(k, 2)
        if mat == 0: A(f"s_mov_b32 s42, {4*u*9216}")
        A(f"buffer_load_dwordx4 {vr(BIG+4*k)}, v6, {'s[52:55]' if mat else 's[44:47]'}, s42 offen{fl(wfl)}")
    gi = 0
    while gi < hD: gu_issue(gi); gi += 1
    A("v_mov_b32 v27, s96")
    hands(24, AOP, 0)
    for k in range(36):
        u, mat = divmod(k, 2)
        if mat == 0:
            if u + 1 < 18: hands(24 + ((u+1) >> 4), AOP + 4*((u+1) & 1), (u+1) & 15)
            else: A("s_nop 1")
        A(f"s_waitcnt vmcnt({gi-k-1})")
        d = 64 + 4*mat
        c = "0" if u == 0 else vr(d)
        A(f"v_mfma_f32_16x16x32_bf16 {vr(d)}, {vr(AOP+4*(u&1))}, {vr(BIG+4*k)}, {c}")
        if gi < 36: gu_issue(gi); gi += 1
    owntag("s58")
    A(f"s_lshl_b32 s40, s33, 14\ns_add_u32 s40, s40, {QX}\nv_and_b32 v3, 31, v0\nv_lshl_add_u32 v3, v3, 9, s40\nglobal_load_ubyte v4, v3, s[26:27] offset:508{ldl if qlocal else qld}")
    A(f"s_mul_i32 s40, s33, 5\ns_add_u32 s40, s40, s56\ns_lshl_b32 s40, s40, 3\ns_add_u32 s40, s40, s30\ns_lshl_b32 s40, s40, 10\ns_add_u32 s40, s40, {GUG}\nv_lshlrev_b32 v5, 5, v10\nv_lshl_add_u32 v5, v11, 4, v5\nv_add_u32 v5, s40, v5")
    for r in range(8): tag(64+r, 27, 8)
    A("s_waitcnt vmcnt(0)\nv_cmp_ne_u32 vcc, s58, v4\ns_cmp_eq_u64 vcc, 0\ns_cselect_b32 s59, 1, 0\ns_mov_b32 exec_hi, 0")
    store2("s59", ["global_store_dwordx4 v5, v[64:67], s[26:27]", "global_store_dwordx4 v5, v[68:71], s[26:27] offset:512"])
    A("s_mov_b64 exec, -1")
    stamp(4)
    A("s_cmp_eq_u32 s57, 0\ns_cbranch_scc1 L_hC")
    A("s_mul_i32 s40, s31, 20736\ns_add_u32 s44, s20, s40\ns_addc_u32 s45, s21, 0\ns_mov_b32 s46, 20736\ns_mov_b32 s47, 0x20000")
    A("v_mul_u32_u24 v6, 1152, v11\nv_lshl_add_u32 v2, v8, 4, v6\nv_lshl_add_u32 v6, v10, 4, v6")
    for k in range(25):
        rq, pr = divmod(k, 5)
        if pr == 0: A(f"s_mov_b32 s42, {4608*rq}")
        A(f"s_waitcnt vmcnt({hD-1})")
        A(f"buffer_load_dwordx4 {vr(BIG+4*k)}, v{2 if pr == 4 else 6}, s[44:47], s42 offen offset:{256*pr}{fl(wfl)}")
    A(f"s_mul_i32 s40, s34, 18\nv_add_u32 v3, s40, v11\ns_mul_i32 s40, s33, 40960\ns_add_u32 s40, s40, {GUG}\nv_lshl_add_u32 v7, v8, 10, s40")
    for rq in range(5):
        A(f"v_add_u32 v4, {4*rq}, v3\nv_min_u32 v4, 575, v4\nv_lshrrev_b32 v5, 7, v4\nv_lshl_add_u32 v5, v5, 13, v7\nv_and_b32 v4, 127, v4\nv_lshl_add_u32 v{16+rq}, v4, 2, v5")
    A("L_gpoll:")
    G0 = 28
    load2("s59", [f"global_load_dword v{G0+2*rq+mat}, v{16+rq}, s[26:27] offset:{512*mat}" for rq in range(5) for mat in range(2)])
    A(f"s_waitcnt vmcnt(0)")
    check(list(range(G0, G0+10)), 3, 8)
    A(f"s_cbranch_vccz L_gdone\ns_sleep {gsleep}")
    loop("L_gpoll")
    A("L_gdone:")
    for c in RED8:
        for k in range(10): A(f"v_add_f32_dpp v{G0+k}, v{G0+k}, v{G0+k} {c} {DPPF}")
    for rq in range(5):
        b = G0+2*rq
        A(f"v_cvt_pk_bf16_f32 v{b}, v{b}, v{b+1}\nv_and_b32 v{b+1}, 0xffff0000, v{b}\nv_lshlrev_b32 v{b}, 16, v{b}\nv_mul_f32 v{b}, v{b}, v{b+1}\nv_cvt_pk_bf16_f32 v{b}, v{b}, v{b}")
    A(f"s_mov_b32 exec_lo, 0\nv_mov_b32 v{G0+8}, 0\ns_mov_b64 exec, -1")
    for rq in range(5): hands(G0+2*rq, AOP+4*rq)
    A("s_nop 1")
    for k in range(25):
        rq, pr = divmod(k, 5)
        c = "0" if rq == 0 else vr(44+4*pr)
        A(f"v_mfma_f32_16x16x32_bf16 {vr(44+4*pr)}, {vr(AOP+4*rq)}, {vr(BIG+4*k)}, {c}")
    A("s_nop 3")
    for pr in range(5): A(f"s_nop 0\nds_write_b128 v1, {vr(44+4*pr)} offset:{YB+1024*pr}")
    A("s_waitcnt lgkmcnt(0)")
    stamp(5)
    A("s_branch L_hC")
    A("L_h3:")
    masks()
    A("s_waitcnt lgkmcnt(0)"); epoch_use()
    A(f"v_mov_b32 v27, s43\ns_not_b32 s40, s63\nv_mov_b32 v3, s40\nv_lshlrev_b32 v4, 2, v10\nds_write_b32 v4, v3 offset:{ML4}\nv_lshlrev_b32 v4, 2, v8\nds_write_b32 v4, v3 offset:{WF}\ns_waitcnt lgkmcnt(0)\ns_barrier")
    WO = 212
    def tail_setup(h3):
        A("s_mul_i32 s40, s31, 18432\ns_add_u32 s44, s12, s40\ns_addc_u32 s45, s13, 0\ns_mov_b32 s46, 18432\ns_mov_b32 s47, 0x20000")
        A("v_mul_u32_u24 v6, 4608, v11\nv_lshl_add_u32 v2, v8, 4, v6\nv_lshl_add_u32 v6, v10, 4, v6\ns_lshl_b32 s40, s35, 8\nv_add_u32 v6, s40, v6\ns_mov_b32 s49, 2304")
        for k in range(8 if h3 else 4):
            pb, rq = divmod(k, 4)
            A(f"s_waitcnt vmcnt({woD-1})")
            A(f"buffer_load_dwordx4 {vr(WO+4*k)}, v{2 if pb else 6}, s[44:47], {'0' if rq < 2 else 's49'} offen offset:{(rq&1)*1152+1024*pb}{fl(wfl)}")
        stamp(6)
        if omerge:
            A(f"s_lshl_b32 s40, s29, 12\ns_lshl_b32 s41, s30, 6\ns_add_u32 s40, s40, s41\ns_add_u32 s40, s40, {OX}\nv_lshlrev_b32 v7, 9, v8\nv_lshl_add_u32 v7, v11, 4, v7\nv_add_u32 v7, s40, v7")
            A(f"v_and_b32 v4, 1, v11\nv_lshlrev_b32 v4, 4, v4\nv_lshl_add_u32 v4, v10, 5, v4\ns_lshl_b32 s40, s31, 9\ns_add_u32 s40, s40, {OX}\nv_add_u32 v6, s40, v4\nv_mov_b32 v75, v4")
            A(f"v_mov_b32 v3, 0\nds_read_b32 v3, v3 offset:{WF+32}\ns_waitcnt lgkmcnt(0)\nv_readfirstlane_b32 s59, v3")
        else:
            A(f"s_lshl_b32 s40, s29, 14\ns_lshl_b32 s41, s30, 6\ns_add_u32 s40, s40, s41\ns_add_u32 s40, s40, {OX}\nv_lshlrev_b32 v7, 9, v10\nv_lshl_add_u32 v7, v11, 4, v7\nv_add_u32 v7, s40, v7\nv_add_u32 v6, 0x2000, v7")
        A(f"v_lshlrev_b32 v5, 5, v10\nv_lshl_add_u32 v5, v11, 4, v5\ns_mul_i32 s40, s31, 2304\ns_lshl_b32 s41, s35, 9\ns_add_u32 s40, s40, s41\nv_add_u32 v5, s40, v5\nv_mov_b32 v9, 0")
        A(f"s_lshl_b32 s40, s35, 10\nv_add_u32 v2, s40, v1\nv_mov_b32 v27, s43")
        final_setup()
    tail_setup(True)
    if dry: A("s_mov_b32 s98, 0\ns_mov_b32 s99, 0\ns_mov_b64 exec, 0\ns_branch L_tail\nL_real:\ns_mov_b32 s98, -1\ns_mov_b32 s99, -1\ns_mov_b64 exec, -1")
    A("L_m4:\ns_sleep 16")
    for w in range(4): A(f"ds_read_b128 {vr(28+4*w)}, v9 offset:{ML4+16*w}")
    A("s_waitcnt lgkmcnt(0)")
    for w in range(4): A(f"v_xor_b32 v{29+4*w}, s63, v{29+4*w}\nv_xor_b32 v{31+4*w}, s63, v{31+4*w}")
    ortree([29, 31, 33, 35, 37, 39, 41, 43], 3)
    A("v_cmp_ne_u32 vcc, 0, v3\ns_cbranch_vccz L_m4d")
    loop("L_m4")
    A("L_m4d:\nv_max3_f32 v16, v28, v32, v36\nv_max_f32 v16, v16, v40")
    for w in range(4): A(f"v_sub_f32 v{20+w}, v{28+4*w}, v16")
    for w in range(4): A(f"v_exp_f32 v{20+w}, v{20+w}")
    A("v_mov_b32 v17, s63\nv_mov_b32 v19, s63\nv_mul_f32 v18, v30, v20\nv_fmac_f32 v18, v34, v21\nv_fmac_f32 v18, v38, v22\nv_fmac_f32 v18, v42, v23")
    A(f"s_lshl_b32 s40, s31, 7\ns_add_u32 s40, s40, {MLG}\nv_add_u32 v3, s40, v1\ns_mov_b64 exec, 0xff")
    store2("s59", ["global_store_dwordx4 v3, v[16:19], s[26:27]"])
    A(f"s_mov_b64 exec, -1\ns_lshl_b32 s40, s29, 10\ns_add_u32 s40, s40, {MLG}\nv_lshl_add_u32 v4, v8, 7, s40")
    A(f"L_mlp:\ns_sleep 32")
    load2("s59", ["global_load_dwordx4 v[28:31], v4, s[26:27]"])
    A("s_waitcnt vmcnt(0)")
    A("v_xor_b32 v29, s63, v29\nv_xor_b32 v31, s63, v31\nv_or_b32 v3, v29, v31\nv_cmp_ne_u32 vcc, 0, v3\ns_cbranch_vccz L_mld")
    loop("L_mlp")
    A("L_mld:\nv_mov_b32 v24, v28")
    for c in RED8: A(f"s_nop 1\nv_max_f32_dpp v24, v24, v24 {c} {DPPF}")
    A("v_sub_f32 v25, v28, v24\nv_exp_f32 v25, v25\ns_nop 0\nv_mul_f32 v25, v30, v25")
    for c in RED8: A(f"s_nop 1\nv_add_f32_dpp v25, v25, v25 {c} {DPPF}")
    A("v_rcp_f32 v25, v25\nv_sub_f32 v24, v16, v24\nv_exp_f32 v24, v24\ns_nop 0\nv_mul_f32 v24, v24, v25")
    for w in range(4): A(f"v_mul_f32 v{28+2*w}, v{20+w}, v24\nv_mov_b32 v{29+2*w}, s63")
    A(f"ds_write_b128 v9, v[28:31] offset:{WF}\nds_write_b128 v9, v[32:35] offset:{WF+16}\ns_waitcnt lgkmcnt(0)")
    stamp(10)
    A("s_barrier")
    A("L_tail:")
    stamp(7)
    if omerge:
        A("s_cmp_eq_u32 s35, 3\ns_cbranch_scc0 L_nom")
        for w in range(4): A(f"ds_read_b128 {vr(52+4*w)}, v75 offset:{OP+512*w}")
        A("s_waitcnt lgkmcnt(2)")
        for r in range(4): A(f"v_add_f32 v{52+r}, v{52+r}, v{56+r}")
        A("s_waitcnt lgkmcnt(0)")
        for r in range(4): A(f"v_add_f32 v{60+r}, v{60+r}, v{64+r}")
        for r in range(4): A(f"v_add_f32 v{52+r}, v{52+r}, v{60+r}")
        for r in range(4): tag(52+r, 27)
        A("s_mov_b32 exec_hi, 0")
        store2("s59", ["global_store_dwordx4 v6, v[52:55], s[26:27]"])
        exall()
        A("L_nom:")
    A(f"ds_read_b128 v[44:47], v2 offset:{YB}\nds_read_b128 v[48:51], v1 offset:{YB+4096}")
    if ofirst: A(f"s_sleep {ofirst}")
    if NPO > 1: ppoll("L_op", NPO, [7, 6], 32, 112, ldl, ogap, 26)
    else:
        if "rtt" in diag: A("s_mov_b32 s95, 0")
        A("L_oxc:")
        if "rtt" in diag: stamp(1); A("s_add_u32 s95, s95, 1")
        assert omerge
        load2("s59", ["global_load_dwordx4 v[32:35], v7, s[26:27]"])
        A("s_waitcnt vmcnt(0)")
        if "rtt" in diag: stamp(2); A("s_waitcnt lgkmcnt(0)\ns_mov_b32 s70, s95\ns_mov_b32 s71, 0")
        check(list(range(32, 36 if omerge else 40)), 26)
        A("s_and_b64 exec, exec, vcc\ns_cbranch_execz L_oxd")
        if osleep: A(f"s_sleep {osleep}")
        loop("L_oxc")
        A("L_oxd:"); exall()
    stamp(8)
    if not omerge:
        for r in range(4): A(f"v_add_f32 v{32+r}, v{32+r}, v{36+r}")
    else: A("s_nop 0")
    for c in (RED8 if omerge else RED16):
        for r in range(4): A(f"v_add_f32_dpp v{32+r}, v{32+r}, v{32+r} {c} {DPPF}")
    for r in range(4): A(f"v_cvt_pk_bf16_f32 v{32+r}, v{32+r}, v{32+r}")
    for r in range(4): hands(32+r, AOP+4*r)
    A("s_waitcnt lgkmcnt(0)")
    for rq in range(4): A(f"v_mfma_f32_16x16x32_bf16 v[44:47], {vr(AOP+4*rq)}, {vr(WO+4*rq)}, v[44:47]")
    A("s_cmp_eq_u32 s35, 3\ns_cbranch_scc0 L_y1")
    for rq in range(4): A(f"v_mfma_f32_16x16x32_bf16 v[48:51], {vr(AOP+4*rq)}, {vr(WO+16+4*rq)}, v[48:51]")
    A("L_y1:\ns_mov_b32 exec_hi, 0\ns_nop 4")
    for r in range(4): tag(44+r, 27)
    A(f"global_store_dwordx4 v5, v[44:47], s[26:27]{WT}\ns_cbranch_scc0 L_y3\ns_and_b32 exec_lo, s98, 0x00ff00ff")
    for r in range(4): tag(48+r, 27)
    A(f"global_store_dwordx4 v5, v[48:51], s[26:27] offset:512{WT}\nL_y3:"); exall()
    stamp(9)
    final()
    A("L_hC:")
    tail_setup(False)
    A("s_barrier\ns_branch L_tail")

    A("L_s2:")
    masks()
    S = 60
    A("v_lshlrev_b32 v2, 4, v0")
    A("v_and_b32 v3, 3, v10\nv_lshl_add_u32 v3, v11, 2, v3\nv_lshlrev_b32 v3, 4, v3")
    A("s_mov_b32 s52, 0x000f000f\ns_mov_b32 s53, 0x000f000f\ns_mov_b32 s54, 0x00f000f0\ns_mov_b32 s55, 0x00f000f0")
    A("s_mov_b32 s56, 0x0f000f00\ns_mov_b32 s57, 0x0f000f00\ns_mov_b32 s58, 0xf000f000\ns_mov_b32 s59, 0xf000f000")
    A(f"s_mov_b32 s60, {SCALE:#x}\ns_mov_b32 s61, {LOG2E:#x}\nv_mov_b32 v52, 0xff800000")
    if omerge: A("s_lshl_b32 s40, s28, 9")
    else: A(f"s_lshl_b32 s40, s31, 2\ns_add_u32 s40, s40, s28\ns_lshl_b32 s40, s40, 9\ns_add_u32 s40, s40, {OX}")
    A(f"v_lshlrev_b32 v57, 5, v10\nv_lshl_add_u32 v57, v11, 4, v57\nv_add_u32 v57, s40, v57")
    A("s_lshl_b32 s41, s28, 4\nv_mov_b32 v58, s41\ns_lshl_b32 s41, s28, 3\nv_mov_b32 v9, s41\nv_mov_b32 v8, 0")
    while issued[0] < R0:
        A(f"s_waitcnt vmcnt({P-1})"); issue_unit()
    stamp(1)
    A("s_barrier")
    stamp(2)
    A(f"ds_read_b128 v[4:7], v3 offset:{QL}\nds_read_b32 v8, v8 offset:{WF+32}")
    A("s_waitcnt lgkmcnt(0)")
    for u in range(4):
        for w in range(4): A(f"v_cndmask_b32 v{16+4*u+w}, 0, v{4+w}, s[{52+2*u}:{53+2*u}]")
    A("v_mov_b32 v53, 0\nv_readfirstlane_b32 s42, v8")
    epoch_use()
    A("v_mov_b32 v59, s43")
    if fb is not None:
        assert RING >= 96
        A(f"v_mov_b32 v8, 0\ns_lshl_b32 s41, s28, 2\nv_mov_b32 v3, s41\ns_mov_b32 s41, {Linit}")
    def post(i):
        d = 32 + 4*(i & 1); t = S + i
        A(f"v_mov_b32_dpp v{t}, v{d} quad_perm:[0,0,0,0] {DPPF}\nv_mov_b32_dpp v55, v{d+2} quad_perm:[2,2,2,2] {DPPF}\ns_nop 0")
        A(f"v_add_f32_dpp v{t}, v{d+1}, v{t} quad_perm:[1,1,1,1] {DPPF}\nv_add_f32_dpp v55, v{d+3}, v55 quad_perm:[3,3,3,3] {DPPF}")
        A(f"v_add_f32 v{t}, v{t}, v55")
        if i & 1:
            a, b = t-1, t
            A(f"v_cvt_pk_bf16_f32 v56, v{a}, v{b}\nv_lshlrev_b32 v{a}, 16, v56\nv_and_b32 v{b}, 0xffff0000, v56")
            A(f"v_mul_f32 v{a}, s60, v{a}\nv_mul_f32 v{b}, s60, v{b}")
            A(f"v_cvt_pk_bf16_f32 v56, v{a}, v{b}\nv_lshlrev_b32 v{a}, 16, v56\nv_and_b32 v{b}, 0xffff0000, v56")
            A(f"v_max3_f32 v52, v52, v{a}, v{b}")
    since = [0]; extra = [0]
    def throttle():
        ph = issued[0] % 4; t = lab("t")
        for d in range(Dhi-1, Dlo-1, -1):
            A(f"s_cmp_ge_u32 s41, {4*(d+1)-ph}\ns_cbranch_scc1 {t}\ns_waitcnt vmcnt({d-1 + (1 if issued[0]-d < extra[0] else 0)})")
        A(f"{t}:")
    def fb_hooks():
        n = issued[0]
        pts = list(fb)
        if n in pts: A(f"v_mov_b32 v56, {pts.index(n)}\nds_write_b32 v3, v56 offset:{PR}")
        if n % 8 == 0: A(f"ds_read_b32 v11, v8 offset:{LV}")
        if n % 8 == 2: A("s_waitcnt lgkmcnt(0)\nv_readfirstlane_b32 s41, v11")
    def after_consume(k):
        since[0] += 1
        if fb is not None:
            if issued[0] < 256 and issued[0] - R <= k and (issued[0] - (k+1) < Dhi or since[0] >= cu):
                if issued[0] - (k+1) >= Dhi: A(f"s_waitcnt vmcnt({Dhi-1})")
                throttle(); issue_unit(); since[0] = 0; fb_hooks()
            return
        while issued[0] < 256 and issued[0] - R <= k:
            lag = issued[0] - (k+1)
            Dk = D if issued[0] < 128 else DV
            Dk = int(Dk*(k+1) + 1e-9) - int(Dk*k + 1e-9)
            if lag < Dk: issue_unit(); since[0] = 0
            elif since[0] >= cu:
                A(f"s_waitcnt vmcnt({Dk-1})"); issue_unit(); since[0] = 0; break
            else: break
    for k in range(128):
        i, a = divmod(k, 4); d = 32 + 4*(i & 1)
        A(f"s_waitcnt vmcnt({issued[0]-k-1})")
        c = "0" if a == 0 else vr(d)
        A(f"v_mfma_f32_16x16x32_bf16 {vr(d)}, {vr(RING+4*(k%R))}, {vr(16+4*a)}, {c}")
        after_consume(k)
        if a == 3 and i > 0: post(i-1)
    A("s_nop 7")
    post(31)
    stamp(3)
    R4 = ("row_ror:4 "+DPPF, "row_ror:8 "+DPPF, "row_bcast:15 row_mask:0xa bank_mask:0xf", "row_bcast:31 row_mask:0xc bank_mask:0xf")
    for c in R4: A(f"s_nop 1\nv_max_f32_dpp v52, v52, v52 {c}")
    A("s_nop 0\nv_readlane_b32 s62, v52, 63\ns_nop 1\nv_mov_b32 v54, s62\nv_mul_f32 v54, s61, v54")
    def expo(i):
        A(f"v_fma_f32 v{S+i}, v{S+i}, s61, -v54\nv_fma_f32 v{S+i+1}, v{S+i+1}, s61, -v54")
        A(f"v_exp_f32 v{S+i}, v{S+i}\nv_exp_f32 v{S+i+1}, v{S+i+1}\ns_nop 0")
        A(f"v_add_f32 v53, v53, v{S+i}\nv_cvt_pk_bf16_f32 v{S+i}, v{S+i}, v{S+i}")
        A(f"v_add_f32 v53, v53, v{S+i+1}\nv_cvt_pk_bf16_f32 v{S+i+1}, v{S+i+1}, v{S+i+1}")
    expo(0)
    A("s_nop 1")
    def ands(k):
        i, a = divmod(k, 4); o = 44 + 4*(k & 1)
        for w in range(4): A(f"v_and_b32_dpp v{o+w}, v{S+i}, v{12+w} row_newbcast:{4*a} {DPPF}")
    ands(0)
    for k in range(128):
        i, a = divmod(k, 4); n = 128 + k; o = 44 + 4*(k & 1)
        if k % 2 == 0 and 2 + k < 32: expo(2 + k)
        if k == kml:
            for c in R4: A(f"s_nop 1\nv_add_f32_dpp v53, v53, v53 {c}")
            A(f"v_mov_b32 v4, v54\nv_mov_b32 v5, s63\nv_mov_b32 v6, v53\nv_mov_b32 v7, s63\ns_mov_b32 exec_lo, 0\ns_mov_b32 exec_hi, 0x80000000")
            A(f"ds_write_b128 v58, v[4:7] offset:{ML4}\ns_mov_b64 exec, -1")
        if k == kwf: A(f"ds_read_b64 v[4:5], v9 offset:{WF}")
        if k == kpre:
            assert RING >= 96
            for r in range(4): A(f"v_not_b32 v{92+r}, v59")
            A("s_mov_b32 exec_hi, 0")
            store2("s42", ["global_store_dwordx4 v57, v[92:95], s[26:27]"])
            A("s_mov_b64 exec, -1")
            extra[0] = issued[0]
        if k + 1 < 128: ands(k+1)
        else: A("s_nop 1")
        A(f"s_waitcnt vmcnt({issued[0]-n-1 + (1 if n < extra[0] else 0)})")
        c = "0" if k == 0 else vr(40)
        A(f"v_mfma_f32_16x16x32_bf16 {vr(40)}, {vr(o)}, {vr(RING+4*(n%R))}, {c}")
        after_consume(n)
    A(f"L_wf:\ns_waitcnt lgkmcnt(0)\nv_cmp_ne_u32 vcc, s63, v5\ns_cbranch_vccz L_wfd\ns_sleep 1\nds_read_b64 v[4:5], v9 offset:{WF}")
    loop("L_wf")
    A("L_wfd:\ns_mov_b32 exec_hi, 0\ns_nop 3")
    for r in range(4): A(f"v_mul_f32 v{40+r}, v{40+r}, v4")
    if omerge:
        A(f"ds_write_b128 v57, v[40:43] offset:{OP}\ns_waitcnt lgkmcnt(0)")
    else:
        for r in range(4): tag(40+r, 59)
        store2("s42", ["global_store_dwordx4 v57, v[40:43], s[26:27]"])
    A("s_mov_b64 exec, -1")
    stamp(4)
    A("s_barrier")
    final_setup()
    A("s_branch L_final")
    A(f""".section .rodata,"a"
.p2align 6
.amdhsa_kernel {NAME}
  .amdhsa_next_free_vgpr 256
  .amdhsa_next_free_sgpr 100
  .amdhsa_accum_offset 256
  .amdhsa_group_segment_fixed_size 0
  .amdhsa_kernarg_size 96
  .amdhsa_user_sgpr_count 2
  .amdhsa_user_sgpr_kernarg_segment_ptr 1
  .amdhsa_system_sgpr_workgroup_id_x 1
.end_amdhsa_kernel""")
    return HEADER + "\n".join(L) + "\n"

if __name__ == "__main__":
    kw = eval("dict(" + (sys.argv[2] if len(sys.argv) > 2 else "") + ")")
    s = gen(**kw)
    open(sys.argv[1], "w").write(s)
    import hazard
    pr = hazard.check(s)
    print("\n".join(pr) if pr else "no hazards")
```

```python
import sys
NAME = "parallel_sum__mha_block_cached__glu_gated_bilinear__decode_kernel"
HEADER = open('parallel_sum__mha_block_cached__glu_gated_bilinear__decode.s.ref').read().split('; Override launch')[0]
QL, FIN, ML4, WF, PR, LV, HB, YB = 0, 256, 512, 576, 640, 672, 704, 1024
OP = YB + 5*1024
LDS_BYTES = OP + 2048
PA, GUG, OX, MLG, QX, EPOCH, STAMP = 0, 0x90000, 0xe0000, 0x160000, 0x170000, 0x190004, 0x300000
FBL, LVG = 0x1a0000, 0x1b0000
LOG2E, SCALE, EPS, INV576 = 0x3fb8aa3b, 0x3db504f3, 0x3727c5ac, 0x3ae38e39
DPPF = "row_mask:0xf bank_mask:0xf"
RED8 = ("quad_perm:[1,0,3,2]", "quad_perm:[2,3,0,1]", "row_half_mirror")
RED16 = ("row_ror:1", "row_ror:2", "row_ror:4", "row_ror:8")
WT = " sc0 sc1"

def gen(R=40, R0=36, P=5, D=5, DV=5.5, cu=2, hD=3, woD=2, kvfl="nt", wfl="nt", stamps=False, grot=1, psleep=0, gsleep=64, osleep=1,
        kml=40, kwf=112, fine=(), qwait=24, diag=(), barD=True, dry=False, local=True, ldl=" sc1", qlocal=False, qto=12, fb=tuple(range(48,240,16)), Dhi=7, Dlo=4, L0=20, G=6, Linit=21, lsleep=32, kpre=None, ofirst=3, pfirst=0, NPO=1, NPA=1, pgap=2, ogap=1, GX=0, X0=0, omerge=True, pld=WT, qld=WT, lfast=' nt', Lpar=0, LV2=0, srot=0, ktrig=256, gwait=1, tsleep=2, tdelay=0, tk=0):
    L = []
    def A(s): L.extend(s.split("\n"))
    def fl(x): return (" " + x) if x else ""
    def stamp(i):
        if stamps: A(f"s_memrealtime s[{64+2*i}:{65+2*i}]")
    def vr(b, n=4): return f"v[{b}:{b+n-1}]"
    uid = [0]
    def lab(p):
        uid[0] += 1; return f"L_{p}{uid[0]}"
    def wave_reduce(op, v):
        for c in tuple(x+" "+DPPF for x in RED16) + ("row_bcast:15 row_mask:0xa bank_mask:0xf", "row_bcast:31 row_mask:0xc bank_mask:0xf"):
            A(f"s_nop 1\n{op}_dpp v{v}, v{v}, v{v} {c}")
    def masks():
        A("v_and_b32 v3, 1, v10\nv_lshlrev_b32 v3, 4, v3\nv_mov_b32 v4, 0xffff\nv_lshlrev_b32 v4, v3, v4\nv_bfe_u32 v3, v10, 1, 2")
        for w in range(4):
            A(f"v_cmp_eq_u32 vcc, {w}, v3\ns_nop 1\nv_cndmask_b32 v{12+w}, 0, v4, vcc")
    def epoch_load():
        A(f"s_add_u32 s48, s26, {EPOCH}\ns_addc_u32 s49, s27, 0\ns_load_dword s63, s[48:49], 0")
    def epoch_use():
        A(f"s_add_u32 s63, s63, 9\ns_and_b32 s43, s63, 0x3ff\ns_mov_b32 s51, 0xfffffc00\ns_and_b32 s96, s63, 0xff\ns_mov_b32 s97, 0xffffff00")
    def tag(r, vt, bits=10): A(f"v_and_or_b32 v{r}, v{r}, {'s51' if bits == 10 else 's97'}, v{vt}")
    def ortree(regs, t):
        A(f"v_or3_b32 v{t}, v{regs[0]}, v{regs[1]}, v{regs[2]}")
        rest = regs[3:]
        while len(rest) >= 2: A(f"v_or3_b32 v{t}, v{t}, v{rest[0]}, v{rest[1]}"); rest = rest[2:]
        if rest: A(f"v_or_b32 v{t}, v{t}, v{rest[0]}")
    def check(regs, t, bits=10):
        for r in regs: A(f"v_xor_b32 v{r}, {'s43' if bits == 10 else 's96'}, v{r}")
        ortree(regs, t)
        A(f"v_and_b32 v{t}, {(1 << bits) - 1:#x}, v{t}\nv_cmp_ne_u32 vcc, 0, v{t}")
    def loop(l): A(f"s_sub_u32 s94, s94, 1\ns_cbranch_scc0 {l}")
    def ppoll(lb, NP, addrs, canon, base, flv, gap, tmp):
        n = len(addrs)
        def iss(k):
            for a in range(n): A(f"global_load_dwordx4 {vr(base + 4*(n*k + a))}, v{addrs[a]}, s[26:27]{flv}")
        A("s_mov_b64 s[56:57], exec")
        for k in range(NP - 1):
            iss(k)
            if gap: A(f"s_sleep {gap}")
        A(f"{lb}:")
        for k in range(NP):
            iss((k + NP - 1) % NP)
            A(f"s_waitcnt vmcnt({n*(NP-1)})")
            b = base + 4*n*k
            check(list(range(b, b + 4*n)), tmp)
            A("s_andn2_b64 exec, exec, vcc")
            for r in range(4*n): A(f"v_mov_b32 v{canon+r}, v{b+r}")
            A(f"s_and_b64 s[56:57], s[56:57], vcc\ns_mov_b64 exec, s[56:57]\ns_cbranch_execz {lb}d")
            if gap: A(f"s_sleep {gap}")
        loop(lb)
        A(f"{lb}d:"); exall()
    def store2(flag, insns):
        if not local:
            for i in insns: A(i + WT)
            return
        a, b = lab("sw"), lab("sd")
        A(f"s_cmp_eq_u32 {flag}, 0\ns_cbranch_scc1 {a}")
        for i in insns: A(i)
        A(f"s_branch {b}\n{a}:")
        for i in insns: A(i + WT)
        A(f"{b}:")
    def load2(flag, insns):
        a, b = lab("lw"), lab("ld")
        A(f"s_cmp_eq_u32 {flag}, 0\ns_cbranch_scc1 {a}")
        for i in insns: A(i + lfast)
        A(f"s_branch {b}\n{a}:")
        for i in insns: A(i + " sc1")
        A(f"{b}:")
    def hands(src, o, bc=None):
        for w in range(4):
            if bc is None: A(f"v_and_b32 v{o+w}, v{src}, v{12+w}")
            else: A(f"v_and_b32_dpp v{o+w}, v{src}, v{12+w} row_newbcast:{bc} {DPPF}")
    def norm(r):
        A(f"v_lshlrev_b32 v{r}, 16, v{r}\nv_sub_f32 v{r}, v{r}, v45\nv_cvt_pk_bf16_f32 v{r}, v{r}, v{r}\nv_lshlrev_b32 v{r}, 16, v{r}\nv_mul_f32 v{r}, v{r}, v46\nv_cvt_pk_bf16_f32 v{r}, v{r}, v{r}")
    def layernorm():
        for k in range(8):
            A(f"v_lshlrev_b32 v{28+2*k}, 16, v{16+k}\nv_and_b32 v{29+2*k}, 0xffff0000, v{16+k}")
        for k in range(8): A(f"v_add_f32 v{48+k}, v{28+k}, v{36+k}")
        for st in (4, 2):
            for k in range(st): A(f"v_add_f32 v{48+k}, v{48+k}, v{48+k+st}")
        A("v_add_f32 v44, v48, v49")
        wave_reduce("v_add_f32", 44)
        A(f"s_nop 0\nv_readlane_b32 s40, v44, 63\ns_nop 1\nv_mov_b32 v45, s40\nv_mul_f32 v45, {INV576:#x}, v45")
        for k in range(16): A(f"v_sub_f32 v{48+k}, v{28+k}, v45")
        A("v_mul_f32 v44, v48, v48\nv_mul_f32 v47, v49, v49")
        for k in range(2, 8, 2): A(f"v_fmac_f32 v44, v{48+k}, v{48+k}\nv_fmac_f32 v47, v{49+k}, v{49+k}")
        A("s_mov_b64 exec, 0xff")
        for k in range(8, 16, 2): A(f"v_fmac_f32 v44, v{48+k}, v{48+k}\nv_fmac_f32 v47, v{49+k}, v{49+k}")
        A("s_mov_b64 exec, -1\nv_add_f32 v44, v44, v47")
        wave_reduce("v_add_f32", 44)
        A(f"s_nop 0\nv_readlane_b32 s40, v44, 63\ns_nop 1\nv_mov_b32 v46, s40\nv_mul_f32 v46, {INV576:#x}, v46")
        A(f"v_cvt_pk_bf16_f32 v46, v46, v46\nv_lshlrev_b32 v46, 16, v46\nv_add_f32 v46, {EPS:#x}, v46")
        A("v_cvt_pk_bf16_f32 v46, v46, v46\nv_lshlrev_b32 v46, 16, v46\nv_sqrt_f32 v46, v46\ns_nop 0")
        A("v_cvt_pk_bf16_f32 v46, v46, v46\nv_lshlrev_b32 v46, 16, v46\nv_rcp_f32 v46, v46")
        A("v_cvt_pk_bf16_f32 v45, v45, v45\nv_lshlrev_b32 v45, 16, v45")
    def xload():
        A("s_mul_i32 s40, s30, 144\nv_lshl_add_u32 v2, v11, 1, s40\nv_lshl_add_u32 v2, v10, 3, v2")
        A("s_mov_b32 s36, s4\ns_mov_b32 s37, s5\ns_mov_b32 s38, 1152\ns_mov_b32 s39, 0x20000")
        A("buffer_load_dwordx4 v[16:19], v1, s[36:39], 0 offen\nbuffer_load_dwordx4 v[20:23], v1, s[36:39], 0 offen offset:1024")
        A("buffer_load_ushort v24, v2, s[36:39], 0 offen\nbuffer_load_ushort v25, v2, s[36:39], 0 offen offset:128")
    def owntag(dst):
        A(f"s_getreg_b32 {dst}, hwreg(HW_REG_XCC_ID)\ns_and_b32 {dst}, {dst}, 7\ns_and_b32 s40, s63, 0xf8\ns_or_b32 {dst}, {dst}, s40")
    BIG = 112; AOP = 80
    def ex(lo, hi): A(f"s_and_b32 exec_lo, s98, {lo}\ns_and_b32 exec_hi, s98, {hi}")
    def exall(): A("s_mov_b64 exec, s[98:99]")
    OSRD = "s[84:87]" if not stamps else "s[52:55]"
    def final_setup():
        o = 84 if not stamps else 52
        A(f"v_and_b32 v73, 31, v0\ns_lshl_b32 s40, s28, 5\nv_add_u32 v73, s40, v73")
        A(f"v_lshrrev_b32 v74, 5, v0\nv_mul_u32_u24 v68, 2304, v73\nv_lshl_add_u32 v68, v74, 4, v68\ns_min_u32 s41, s2, 71\ns_lshl_b32 s40, s41, 5\nv_add_u32 v68, s40, v68")
        A(f"s_lshl_b32 s40, s41, 4\nv_lshl_add_u32 v69, v0, 1, s40\nv_lshlrev_b32 v70, 2, v0\ns_lshl_b32 s40, s28, 5\nv_lshl_add_u32 v71, v74, 4, s40")
        A(f"s_mov_b32 s36, s4\ns_mov_b32 s37, s5\ns_mov_b32 s38, 1152\ns_mov_b32 s39, 0x20000\ns_mov_b32 s{o}, s22\ns_mov_b32 s{o+1}, s23\ns_mov_b32 s{o+2}, 1152\ns_mov_b32 s{o+3}, 0x20000")
        A("buffer_load_ushort v72, v69, s[36:39], 0 offen\ns_mov_b32 s98, -1\ns_mov_b32 s99, -1")
    def final():
        A("L_final:")
        A(f"s_cmp_ge_u32 s2, 72\ns_cbranch_scc1 L_fin0")
        if barD: A("s_cmp_eq_u32 s98, 0\ns_cbranch_scc1 L_pa\ns_barrier")
        A("L_pa:")
        if pfirst: A(f"s_sleep {pfirst}")
        if NPA > 1: ppoll("L_pp", NPA, [68], 76, 52, WT, pgap, 73)
        else:
            A(f"L_pa1:\nglobal_load_dwordx4 v[76:79], v68, s[26:27]{pld}\ns_waitcnt vmcnt(0)")
            check([76, 77, 78, 79], 73)
            A(f"s_and_b64 exec, exec, vcc\ns_cbranch_execz L_da")
            if psleep: A(f"s_sleep {psleep}")
            loop(f"L_pa1")
            A(f"L_da:"); exall()
        stamp(11)
        for c in tuple(x+" "+DPPF for x in RED16) + ("row_bcast:15 row_mask:0xa bank_mask:0xf",):
            for r in range(4): A(f"v_add_f32_dpp v{76+r}, v{76+r}, v{76+r} {c}")
        ex("0x80000000", "0x80000000")
        A(f"ds_write_b128 v71, v[76:79] offset:{FIN}\ns_waitcnt lgkmcnt(0)\ns_cmp_eq_u32 s98, 0\ns_cbranch_scc1 L_out\ns_barrier")
        stamp(12)
        A(f"s_cmp_lg_u32 s28, 0\ns_cbranch_scc1 L_ep")
        A("L_out:"); ex("0xff", "0")
        if NPA > 1: A("s_nop 0")
        for v in range(4): A(f"ds_read2_b32 v[{32+2*v}:{33+2*v}], v70 offset0:{FIN//4+16*v} offset1:{FIN//4+16*v+8}")
        A("v_lshlrev_b32 v72, 16, v72\ns_waitcnt lgkmcnt(0)")
        for st in (4, 2, 1):
            for k in range(st): A(f"v_add_f32 v{32+k}, v{32+k}, v{32+k+st}")
        A("v_add_f32 v32, v72, v32\nv_cvt_pk_bf16_f32 v32, v32, v32")
        A(f"buffer_store_short v32, v69, {OSRD}, 0 offen")
        A("L_fin0:")
        if dry: A("s_cmp_eq_u32 s98, 0\ns_cbranch_scc1 L_real")
        A("s_branch L_fin\nL_ep:")
        A(f"s_cmp_lg_u32 s2, 0\ns_cbranch_scc1 L_fin\ns_cmp_lg_u32 s28, 4\ns_cbranch_scc1 L_fin")
        A(f"s_mov_b64 exec, 1\nv_mov_b32 v3, {EPOCH:#x}\nv_mov_b32 v4, s63\nglobal_store_dword v3, v4, s[26:27]{WT}")
        A(f"L_fin:")
        if stamps:
            A("s_waitcnt vmcnt(0)\ns_memrealtime s[90:91]\ns_getreg_b32 s92, hwreg(HW_REG_XCC_ID)\ns_mov_b32 s93, 0\ns_waitcnt lgkmcnt(0)")
            A(f"s_lshl_b32 s40, s2, 3\ns_add_u32 s40, s40, s28\ns_lshl_b32 s40, s40, 7\ns_add_u32 s40, s40, {STAMP}\ns_mov_b64 exec, 1\nv_mov_b32 v6, s40")
            for i in range(15):
                A(f"v_mov_b32 v8, s{64+2*i}\nv_mov_b32 v9, s{65+2*i}\nglobal_store_dwordx2 v6, v[8:9], s[26:27] offset:{8*i}")
        if "dbg" in diag:
            A("s_mov_b64 exec, 1\nv_mov_b32 v6, 0\ns_not_b32 s40, s64\nv_mov_b32 v8, s40\nglobal_atomic_umax v6, v8, s[24:25] sc1\nv_mov_b32 v8, s64\nglobal_atomic_umax v6, v8, s[24:25] offset:4 sc1\nv_mov_b32 v8, s90\nglobal_atomic_umax v6, v8, s[24:25] offset:8 sc1")
            A("s_cmp_lt_u32 s28, 4\ns_cbranch_scc0 L_end\nv_mov_b32 v8, s72\nglobal_atomic_umax v6, v8, s[24:25] offset:12 sc1\ns_not_b32 s40, s72\nv_mov_b32 v8, s40\nglobal_atomic_umax v6, v8, s[24:25] offset:16 sc1\nv_mov_b32 v8, s70\nglobal_atomic_umax v6, v8, s[24:25] offset:20 sc1\nv_mov_b32 v8, s68\nglobal_atomic_umax v6, v8, s[24:25] offset:24 sc1")
        A(f"L_end:\ns_endpgm")

    A(f"; @launch grid=(256,1,1) block=(512,1,1) lds={LDS_BYTES}")
    A('.amdgcn_target "amdgcn-amd-amdhsa--gfx950"\n.text')
    A(f".globl {NAME}\n.p2align 8\n.type {NAME},@function\n{NAME}:")
    stamp(0)
    A("s_cmp_ge_u32 s2, 256\ns_cbranch_scc1 L_end")
    A("s_load_dwordx16 s[4:19], s[0:1], 0\ns_load_dwordx8 s[20:27], s[0:1], 64")
    A("v_lshrrev_b32 v1, 6, v0\nv_and_b32 v0, 63, v0")
    A("s_and_b32 s33, s2, 7\ns_lshr_b32 s34, s2, 3")
    A("v_readfirstlane_b32 s28, v1")
    A("s_lshl_b32 s31, s33, 5\ns_add_u32 s31, s31, s34\ns_lshr_b32 s29, s31, 3\ns_and_b32 s30, s31, 7")
    A("v_lshrrev_b32 v11, 4, v0\nv_and_b32 v10, 15, v0")
    A("s_mov_b32 s94, 0x40000\ns_cmp_lt_u32 s28, 4\ns_cbranch_scc0 L_hstart")
    RING = 256 - 4*R
    assert RING >= 92 and R % 4 == 0 and R0 <= R
    A("v_bfe_u32 v1, v0, 2, 2\nv_lshlrev_b32 v1, 8, v1\nv_lshl_add_u32 v1, v11, 6, v1\nv_and_b32 v3, 3, v0\nv_lshl_add_u32 v1, v3, 4, v1")
    A(f"s_lshl_b32 s40, s29, 22")
    A(f"s_mul_i32 s50, s29, {grot*0x20000}\ns_lshl_b32 s41, s30, 14\ns_add_u32 s50, s50, s41\ns_lshl_b32 s41, s28, 12\ns_add_u32 s50, s50, s41\ns_and_b32 s50, s50, 0x3fffff")
    A("s_mov_b32 s38, 0x400000\ns_mov_b32 s39, 0x20000\ns_mov_b32 s46, 0x400000\ns_mov_b32 s47, 0x20000")
    A("s_waitcnt lgkmcnt(0)")
    A("s_add_u32 s36, s6, s40\ns_addc_u32 s37, s7, 0\ns_add_u32 s44, s8, s40\ns_addc_u32 s45, s9, 0")
    issued = [0]
    def issue_unit():
        n = issued[0]; a = n % 4
        A(f"buffer_load_dwordx4 {vr(RING + 4*(n % R))}, {'v1' if n < 128 else 'v2'}, {'s[36:39]' if n < 128 else 's[44:47]'}, s50 offen offset:{1024*a}{fl(kvfl)}")
        if a == 3:
            if srot: A(f"s_add_u32 s95, s50, {srot*0x1000}\ns_and_b32 s95, s95, 0x1ffff\ns_add_u32 s50, s50, 0x20000\ns_and_b32 s50, s50, 0x3e0000\ns_or_b32 s50, s50, s95")
            else: A("s_add_u32 s50, s50, 0x20000\ns_and_b32 s50, s50, 0x3fffff")
        issued[0] += 1
        if issued[0] in fine: stamp(5 + list(fine).index(issued[0]))
    for n in range(min(P, R0)): issue_unit()
    epoch_load()
    A("s_branch L_s2")

    A("L_hstart:")
    A("s_sub_u32 s35, s28, 4\nv_lshlrev_b32 v1, 4, v0\nv_and_b32 v8, 7, v10")
    A("s_cmp_eq_u32 s35, 0\ns_cbranch_scc0 L_h123")
    A("s_mul_i32 s40, s30, 589824\ns_lshl_b32 s41, s29, 8\ns_add_u32 s40, s40, s41")
    A("v_lshlrev_b32 v7, 13, v11\nv_lshl_add_u32 v7, v10, 4, v7\nv_add_u32 v7, s40, v7")
    A("s_mov_b32 s46, 4718592\ns_mov_b32 s47, 0x20000\ns_mov_b32 s42, 0")
    A("s_waitcnt lgkmcnt(0)")
    xload()
    A("s_mov_b32 s44, s10\ns_mov_b32 s45, s11")
    for u in range(18):
        A(f"buffer_load_dwordx4 {vr(BIG+4*u)}, v7, s[44:47], s42 offen{fl(wfl)}")
        if u < 17: A("s_add_u32 s42, s42, 0x8000")
    epoch_load()
    stamp(1)
    masks()
    A(f"v_lshlrev_b32 v5, 5, v10\nv_lshl_add_u32 v5, v11, 4, v5\ns_lshl_b32 s40, s31, 9\ns_add_u32 s40, s40, {QX}\nv_add_u32 v5, s40, v5")
    A(f"s_lshl_b32 s40, s29, 12\ns_add_u32 s40, s40, {QX}\nv_add_u32 v6, s40, v1")
    if fb is not None: A(f"v_mov_b32 v9, 0\nv_mov_b32 v3, -1\nds_write_b32 v9, v3 offset:{PR}\nds_write_b32 v9, v3 offset:{PR+16}\nv_mov_b32 v3, {Linit}\nds_write_b32 v9, v3 offset:{LV}")
    A("s_waitcnt vmcnt(20)")
    layernorm()
    A("s_waitcnt vmcnt(18) lgkmcnt(0)")
    epoch_use()
    for t in range(2): norm(24+t)
    stamp(2)
    owntag("s58")
    A("v_mov_b32 v27, s58")
    hands(24, AOP, 0)
    for u in range(18):
        if u + 1 < 18: hands(24 + ((u+1) >> 4), AOP + 4*((u+1) & 1), (u+1) & 15)
        else: A("s_nop 1")
        A(f"s_waitcnt vmcnt({17-u})")
        c = "0" if u == 0 else vr(64)
        A(f"v_mfma_f32_16x16x32_bf16 {vr(64)}, {vr(AOP+4*(u&1))}, {vr(BIG+4*u)}, {c}")
    A("s_mov_b32 exec_hi, 0\ns_nop 6")
    for r in range(4): tag(64+r, 27, 8)
    A(f"global_store_dwordx4 v5, v[64:67], s[26:27]{'' if qlocal else WT}\ns_mov_b64 exec, -1\ns_mov_b32 s41, {qto}")
    stamp(3)
    if qwait: A(f"s_sleep {qwait}")
    A("L_qpoll:")
    for p in range(4): A(f"global_load_dwordx4 {vr(BIG+4*p)}, v6, s[26:27] offset:{1024*p}{ldl if qlocal else qld}")
    A("s_waitcnt vmcnt(0)")
    for r in range(BIG, BIG+16): A(f"v_xor_b32 v{r}, s58, v{r}")
    ortree(list(range(BIG, BIG+16)), 3)
    A("v_and_b32 v4, 0xf8, v3\nv_cmp_ne_u32 vcc, 0, v4\ns_cbranch_vccz L_qdone")
    if qlocal: A("s_sleep 4\ns_sub_u32 s41, s41, 1\ns_cmp_lg_u32 s41, 0\ns_cbranch_scc1 L_qpoll2\nbuffer_wbl2 sc1\ns_waitcnt vmcnt(0)\nL_qpoll2:")
    loop("L_qpoll")
    A("L_qdone:\nv_and_b32 v4, 7, v3\nv_cmp_ne_u32 vcc, 0, v4")
    for r in range(BIG, BIG+16): A(f"v_and_b32 v{r}, s97, v{r}")
    A("s_cmp_eq_u64 vcc, 0\ns_cselect_b32 s40, 1, 0")
    for r in range(4): A(f"v_add_f32 v{BIG+r}, v{BIG+r}, v{BIG+4+r}\nv_add_f32 v{BIG+8+r}, v{BIG+8+r}, v{BIG+12+r}")
    for r in range(4): A(f"v_add_f32 v{BIG+r}, v{BIG+r}, v{BIG+8+r}")
    for r in range(4): A(f"v_mov_b32 v{BIG+4+r}, v{BIG+r}")
    A("v_and_b32 v4, 31, v0\nv_lshlrev_b32 v4, 3, v4")
    for r in range(4): A(f"v_permlane32_swap_b32 v{BIG+4+r}, v{BIG+r}")
    for r in range(4): A(f"v_add_f32 v{BIG+r}, v{BIG+4+r}, v{BIG+r}")
    A(f"v_cvt_pk_bf16_f32 v{BIG+8}, v{BIG}, v{BIG+1}\nv_cvt_pk_bf16_f32 v{BIG+9}, v{BIG+2}, v{BIG+3}\nds_write_b64 v4, v[{BIG+8}:{BIG+9}] offset:{QL}")
    A(f"v_mov_b32 v3, s40\nv_mov_b32 v4, 0\nds_write_b32 v4, v3 offset:{WF+32}\ns_waitcnt lgkmcnt(0)")
    stamp(4)
    A("s_barrier")
    if fb:
        A(f"v_mov_b32 v9, 0\ns_lshl_b32 s40, s33, 8\ns_add_u32 s40, s40, {FBL}\nv_lshl_add_u32 v5, v0, 2, s40\ns_add_u32 s46, s40, 128\nv_mov_b32 v7, s46\ns_lshl_b32 s42, s34, 2\ns_add_u32 s40, s40, s42\nv_mov_b32 v6, s40")
        A(f"s_lshl_b32 s40, s33, 7\ns_add_u32 s40, s40, {LVG}\nv_mov_b32 v26, s40\nv_lshlrev_b32 v2, 7, v0\nv_add_u32 v2, {LVG:#x}, v2")
        A(f"s_mov_b32 s41, 0\ns_lshl_b32 s44, s63, 5\ns_and_b32 s60, s58, 1\ns_mul_i32 s60, s60, {Lpar}")
        A(f"L_fb:\nds_read_b32 v3, v9 offset:{PR}\ns_waitcnt lgkmcnt(0)\nv_readfirstlane_b32 s40, v3\ns_cmp_ge_i32 s40, s41\ns_cbranch_scc1 L_fb2\ns_sleep 4")
        A("s_sub_u32 s94, s94, 1\ns_cbranch_scc0 L_fb\ns_branch L_hC")
        A(f"L_fb2:\ns_add_u32 s45, s44, s41\nv_mov_b32 v4, s45\ns_mov_b32 exec_hi, {1 if GX else 0}\nglobal_load_dword v3, v5, s[26:27] nt\ns_mov_b64 exec, 1\nglobal_store_dword v6, v4, s[26:27]")
        A(f"s_mov_b32 exec_lo, -1\ns_waitcnt vmcnt(1)")
        if GX: A(f"v_readlane_b32 s46, v3, 32\ns_sub_u32 s46, s46, s44\ns_cmp_lt_u32 s46, 32\ns_cselect_b32 s46, s46, {X0}")
        A(f"v_sub_u32 v3, v3, v4\nv_cmp_gt_u32 vcc, 32, v3\ns_bcnt1_i32_b64 s42, vcc\ns_mov_b64 exec, 1")
        A(f"s_mul_i32 s40, s42, {G}\ns_lshr_b32 s40, s40, 5\ns_add_u32 s40, s40, {L0}")
        if GX: A("s_add_u32 s40, s40, s46")
        if Lpar: A("s_add_u32 s40, s40, s60")
        if LV2:
            nv = sum(1 for q in fb if q < 152)
            A(f"s_cmp_ge_u32 s41, {nv}\ns_cselect_b32 s46, {LV2}, 0\ns_add_u32 s40, s40, s46")
        A(f"v_mov_b32 v3, s40\nds_write_b32 v9, v3 offset:{LV}")
        if GX:
            A(f"s_sub_u32 s42, s42, 15\ns_cmp_lt_u32 s42, 2\ns_cbranch_scc0 L_fb3")
            A(f"s_mov_b64 exec, 0xff\nglobal_load_dword v3, v2, s[26:27]{WT}\ns_mov_b64 exec, 1\nglobal_store_dword v26, v4, s[26:27]{WT}\ns_mov_b64 exec, 0xff\ns_waitcnt vmcnt(1)")
            A(f"v_sub_u32 v3, v3, v4\nv_cmp_gt_u32 vcc, 32, v3\ns_bcnt1_i32_b64 s42, vcc\ns_min_u32 s42, s42, 7\ns_mul_i32 s42, s42, {GX}\ns_lshr_b32 s42, s42, 3\ns_add_u32 s42, s42, s44\ns_mov_b64 exec, 1\nv_mov_b32 v3, s42\nglobal_store_dword v7, v3, s[26:27]\nL_fb3:")
        A(f"s_mov_b64 exec, -1\ns_add_u32 s41, s41, 1\ns_cmp_lt_u32 s41, {len(fb)}\ns_cbranch_scc1 L_fb")
    A("s_branch L_hC")
    A("L_h123:")
    A("s_waitcnt lgkmcnt(0)")
    epoch_load()
    A("s_cmp_eq_u32 s35, 3\ns_cbranch_scc1 L_h3")
    A("s_and_b32 s56, s29, 3\ns_mov_b32 s57, 1\nv_mov_b32 v9, v10\ns_cmp_eq_u32 s35, 1\ns_cbranch_scc1 L_gu")
    A("s_cmp_eq_u32 s56, 0\ns_mov_b32 s56, 4\ns_mov_b32 s57, 0\nv_mov_b32 v9, v8\ns_cbranch_scc1 L_gu")
    masks()
    A("s_waitcnt lgkmcnt(0)"); epoch_use()
    A("s_barrier\ns_branch L_hC")
    A("L_gu:")
    xload()
    masks()
    A(f"s_waitcnt vmcnt(2)")
    layernorm()
    A(f"s_waitcnt vmcnt(0) lgkmcnt(0)")
    epoch_use()
    for t in range(2): norm(24+t)
    A("s_barrier")
    A("s_mul_i32 s40, s33, 1152\ns_lshl_b32 s41, s56, 8\ns_add_u32 s40, s40, s41")
    A("s_add_u32 s44, s16, s40\ns_addc_u32 s45, s17, 0\ns_sub_u32 s46, 5308416, s40\ns_mov_b32 s47, 0x20000")
    A("s_add_u32 s52, s18, s40\ns_addc_u32 s53, s19, 0\ns_mov_b32 s54, s46\ns_mov_b32 s55, 0x20000")
    A("s_mul_i32 s40, s30, 663552\ns_mov_b32 s42, 9216\nv_mul_lo_u32 v6, v11, s42\nv_lshl_add_u32 v6, v9, 4, v6\nv_add_u32 v6, s40, v6")
    def gu_issue(k):
        u, mat = divmod(k, 2)
        if mat == 0: A(f"s_mov_b32 s42, {4*u*9216}")
        A(f"buffer_load_dwordx4 {vr(BIG+4*k)}, v6, {'s[52:55]' if mat else 's[44:47]'}, s42 offen{fl(wfl)}")
    gi = 0
    while gi < hD: gu_issue(gi); gi += 1
    A("v_mov_b32 v27, s96")
    hands(24, AOP, 0)
    for k in range(36):
        u, mat = divmod(k, 2)
        if mat == 0:
            if u + 1 < 18: hands(24 + ((u+1) >> 4), AOP + 4*((u+1) & 1), (u+1) & 15)
            else: A("s_nop 1")
        A(f"s_waitcnt vmcnt({gi-k-1})")
        d = 64 + 4*mat
        c = "0" if u == 0 else vr(d)
        A(f"v_mfma_f32_16x16x32_bf16 {vr(d)}, {vr(AOP+4*(u&1))}, {vr(BIG+4*k)}, {c}")
        if gi < 36: gu_issue(gi); gi += 1
    owntag("s58")
    A(f"s_lshl_b32 s40, s33, 14\ns_add_u32 s40, s40, {QX}\nv_and_b32 v3, 31, v0\nv_lshl_add_u32 v3, v3, 9, s40\nglobal_load_dwordx4 v[72:75], v3, s[26:27] offset:496{ldl if qlocal else qld}")
    A(f"s_mul_i32 s40, s33, 5\ns_add_u32 s40, s40, s56\ns_lshl_b32 s40, s40, 3\ns_add_u32 s40, s40, s30\ns_lshl_b32 s40, s40, 10\ns_add_u32 s40, s40, {GUG}\nv_lshlrev_b32 v5, 5, v10\nv_lshl_add_u32 v5, v11, 4, v5\nv_add_u32 v5, s40, v5")
    for r in range(8): tag(64+r, 27, 8)
    A("s_waitcnt vmcnt(0)")
    for r in range(72, 76): A(f"v_xor_b32 v{r}, s58, v{r}")
    ortree([72, 73, 74, 75], 4)
    A("v_and_b32 v4, 0xff, v4\nv_cmp_ne_u32 vcc, 0, v4\ns_cmp_eq_u64 vcc, 0\ns_cselect_b32 s59, 1, 0\ns_mov_b32 exec_hi, 0")
    store2("s59", ["global_store_dwordx4 v5, v[64:67], s[26:27]", "global_store_dwordx4 v5, v[68:71], s[26:27] offset:512"])
    A("s_mov_b64 exec, -1")
    stamp(4)
    A("s_cmp_eq_u32 s57, 0\ns_cbranch_scc1 L_hC")
    for _ in range(gwait): A("s_sleep 127")
    A(f"s_mul_i32 s40, s34, 18\nv_add_u32 v3, s40, v11\ns_mul_i32 s40, s33, 40960\ns_add_u32 s40, s40, {GUG}\nv_lshl_add_u32 v7, v8, 10, s40")
    for rq in range(5):
        A(f"v_add_u32 v4, {4*rq}, v3\nv_min_u32 v4, 575, v4\nv_lshrrev_b32 v5, 7, v4\nv_lshl_add_u32 v5, v5, 13, v7\nv_and_b32 v4, 127, v4\nv_lshl_add_u32 v{16+rq}, v4, 2, v5")
    A("L_gpoll:")
    G0 = 28
    load2("s59", [f"global_load_dword v{G0+2*rq+mat}, v{16+rq}, s[26:27] offset:{512*mat}" for rq in range(5) for mat in range(2)])
    A(f"s_waitcnt vmcnt(0)")
    check(list(range(G0, G0+10)), 3, 8)
    A(f"s_cbranch_vccz L_gdone\ns_sleep {gsleep}")
    loop("L_gpoll")
    A("L_gdone:")
    for c in RED8:
        for k in range(10): A(f"v_add_f32_dpp v{G0+k}, v{G0+k}, v{G0+k} {c} {DPPF}")
    for rq in range(5):
        b = G0+2*rq
        A(f"v_cvt_pk_bf16_f32 v{b}, v{b}, v{b+1}\nv_and_b32 v{b+1}, 0xffff0000, v{b}\nv_lshlrev_b32 v{b}, 16, v{b}\nv_mul_f32 v{b}, v{b}, v{b+1}\nv_cvt_pk_bf16_f32 v{b}, v{b}, v{b}")
    A(f"s_mov_b32 exec_lo, 0\nv_mov_b32 v{G0+8}, 0\ns_mov_b64 exec, -1")
    A(f"v_mul_u32_u24 v3, 40, v11\ns_mov_b32 exec_lo, 0x00010001\ns_mov_b32 exec_hi, 0x00010001")
    for rq in range(5): A(f"v_mov_b32 v{G0+2*rq+1}, s63\nds_write_b64 v3, v[{G0+2*rq}:{G0+2*rq+1}] offset:{HB+8*rq}")
    A("s_mov_b64 exec, -1\ns_waitcnt lgkmcnt(0)")
    stamp(5)
    A("s_branch L_hC")
    A("L_h3:")
    masks()
    A("s_waitcnt lgkmcnt(0)"); epoch_use()
    A(f"v_mov_b32 v27, s43\ns_not_b32 s40, s63\nv_mov_b32 v3, s40\nv_lshlrev_b32 v4, 2, v10\nds_write_b32 v4, v3 offset:{ML4}\nv_lshlrev_b32 v4, 2, v8\nds_write_b32 v4, v3 offset:{WF}\nv_lshlrev_b32 v4, 2, v0\nds_write_b32 v4, v3 offset:{HB}\ns_waitcnt lgkmcnt(0)\ns_barrier")
    WO = 212
    WD = 112; HA = 192
    def late_loads(h3):
        t = lab("hb")
        A(f"v_mul_u32_u24 v3, 40, v11\n{t}:\ns_sleep 8\nds_read_b64 v[28:29], v3 offset:{HB}\nds_read_b64 v[30:31], v3 offset:{HB+8}\nds_read_b64 v[32:33], v3 offset:{HB+16}\nds_read_b64 v[34:35], v3 offset:{HB+24}\nds_read_b64 v[36:37], v3 offset:{HB+32}\ns_waitcnt lgkmcnt(0)")
        for q in range(5): A(f"v_xor_b32 v{29+2*q}, s63, v{29+2*q}")
        ortree([29, 31, 33, 35, 37], 4)
        A(f"v_cmp_ne_u32 vcc, 0, v4\ns_cbranch_vccz {t}d")
        loop(t)
        A(f"{t}d:")
        for q in range(5): hands(28+2*q, HA+4*q)
        A("s_mul_i32 s40, s31, 18432\ns_add_u32 s44, s12, s40\ns_addc_u32 s45, s13, 0\ns_mov_b32 s46, 18432\ns_mov_b32 s47, 0x20000")
        A("s_mul_i32 s40, s31, 20736\ns_add_u32 s88, s20, s40\ns_addc_u32 s89, s21, 0\ns_mov_b32 s90, 20736\ns_mov_b32 s91, 0x20000" if not stamps else
          "s_mul_i32 s40, s31, 20736\ns_add_u32 s36, s20, s40\ns_addc_u32 s37, s21, 0\ns_mov_b32 s38, 20736\ns_mov_b32 s39, 0x20000")
        DS = "s[88:91]" if not stamps else "s[36:39]"
        A("s_lshl_b32 s40, s35, 8\nv_lshl_add_u32 v28, v10, 4, s40\nv_lshlrev_b32 v29, 4, v8\nv_add_u32 v29, 0x400, v29")
        A("v_mul_u32_u24 v4, 4608, v11\nv_add_u32 v30, v4, v28\nv_add_u32 v31, v4, v29\nv_mul_u32_u24 v4, 1152, v11\nv_add_u32 v28, v4, v28\nv_add_u32 v29, v4, v29")
        A("s_mov_b32 s48, 4608\ns_mov_b32 s49, 9216\ns_mov_b32 s50, 13824\ns_mov_b32 s62, 18432")
        t = lab("tr")
        A(f"{t}:\nds_read_b32 v3, v9 offset:{PR+16}\ns_waitcnt lgkmcnt(0)\nv_readfirstlane_b32 s40, v3\ns_cmp_eq_u32 s40, 100\ns_cbranch_scc1 {t}d\ns_sleep {tsleep}")
        loop(t)
        A(f"{t}d:")
        if tdelay: A(f"s_sleep {tdelay}")
        if tk:
            t2 = lab("tk")
            A(f"ds_read_b32 v3, v9 offset:{LV}\ns_waitcnt lgkmcnt(0)\nv_readfirstlane_b32 s40, v3\ns_sub_u32 s40, {L0+G-1}, s40\ns_min_u32 s40, s40, {G}\ns_mul_i32 s40, s40, {tk}")
            A(f"{t2}:\ns_cmp_eq_u32 s40, 0\ns_cbranch_scc1 {t2}d\ns_sleep 4\ns_sub_u32 s40, s40, 1\ns_branch {t2}\n{t2}d:")
        for pb in range(2 if h3 else 1):
            for rq in range(4): A(f"buffer_load_dwordx4 {vr(WO+16*pb+4*rq)}, v{30+pb}, s[44:47], 0 offen offset:{rq*1152 if rq < 3 else 3456}{fl(wfl)}")
        for pb in range(2 if h3 else 1):
            for rq in range(5): A(f"buffer_load_dwordx4 {vr(WD+20*pb+4*rq)}, v{28+pb}, {DS}, {('0','s48','s49','s50','s62')[rq]} offen{fl(wfl)}")
        stamp(6)
    def tail_setup(h3):
        if omerge:
            A(f"s_lshl_b32 s40, s29, 12\ns_lshl_b32 s41, s30, 6\ns_add_u32 s40, s40, s41\ns_add_u32 s40, s40, {OX}\nv_lshlrev_b32 v7, 9, v8\nv_lshl_add_u32 v7, v11, 4, v7\nv_add_u32 v7, s40, v7")
            A(f"v_and_b32 v4, 1, v11\nv_lshlrev_b32 v4, 4, v4\nv_lshl_add_u32 v4, v10, 5, v4\ns_lshl_b32 s40, s31, 9\ns_add_u32 s40, s40, {OX}\nv_add_u32 v6, s40, v4\nv_mov_b32 v75, v4")
            A(f"v_mov_b32 v3, 0\nds_read_b32 v3, v3 offset:{WF+32}\ns_waitcnt lgkmcnt(0)\nv_readfirstlane_b32 s59, v3")
        else:
            A(f"s_lshl_b32 s40, s29, 14\ns_lshl_b32 s41, s30, 6\ns_add_u32 s40, s40, s41\ns_add_u32 s40, s40, {OX}\nv_lshlrev_b32 v7, 9, v10\nv_lshl_add_u32 v7, v11, 4, v7\nv_add_u32 v7, s40, v7\nv_add_u32 v6, 0x2000, v7")
        A(f"v_lshlrev_b32 v5, 5, v10\nv_lshl_add_u32 v5, v11, 4, v5\ns_mul_i32 s40, s31, 2304\ns_lshl_b32 s41, s35, 9\ns_add_u32 s40, s40, s41\nv_add_u32 v5, s40, v5\nv_mov_b32 v9, 0")
        A(f"v_mov_b32 v27, s43")
        final_setup()
        A("s_waitcnt vmcnt(0)")
    tail_setup(True)
    if dry: A("s_mov_b32 s98, 0\ns_mov_b32 s99, 0\ns_mov_b64 exec, 0\ns_branch L_tail\nL_real:\ns_mov_b32 s98, -1\ns_mov_b32 s99, -1\ns_mov_b64 exec, -1")
    A("L_m4:\ns_sleep 16")
    for w in range(4): A(f"ds_read_b128 {vr(28+4*w)}, v9 offset:{ML4+16*w}")
    A("s_waitcnt lgkmcnt(0)")
    for w in range(4): A(f"v_xor_b32 v{29+4*w}, s63, v{29+4*w}\nv_xor_b32 v{31+4*w}, s63, v{31+4*w}")
    ortree([29, 31, 33, 35, 37, 39, 41, 43], 3)
    A("v_cmp_ne_u32 vcc, 0, v3\ns_cbranch_vccz L_m4d")
    loop("L_m4")
    A("L_m4d:\nv_max3_f32 v16, v28, v32, v36\nv_max_f32 v16, v16, v40")
    for w in range(4): A(f"v_sub_f32 v{20+w}, v{28+4*w}, v16")
    for w in range(4): A(f"v_exp_f32 v{20+w}, v{20+w}")
    A("v_mov_b32 v17, s63\nv_mov_b32 v19, s63\nv_mul_f32 v18, v30, v20\nv_fmac_f32 v18, v34, v21\nv_fmac_f32 v18, v38, v22\nv_fmac_f32 v18, v42, v23")
    A(f"s_lshl_b32 s40, s31, 7\ns_add_u32 s40, s40, {MLG}\nv_add_u32 v3, s40, v1\ns_mov_b64 exec, 0xff")
    store2("s59", ["global_store_dwordx4 v3, v[16:19], s[26:27]"])
    A(f"s_mov_b64 exec, -1\ns_lshl_b32 s40, s29, 10\ns_add_u32 s40, s40, {MLG}\nv_lshl_add_u32 v4, v8, 7, s40")
    A(f"L_mlp:\ns_sleep 32")
    load2("s59", ["global_load_dwordx4 v[28:31], v4, s[26:27]"])
    A("s_waitcnt vmcnt(0)")
    A("v_xor_b32 v29, s63, v29\nv_xor_b32 v31, s63, v31\nv_or_b32 v3, v29, v31\nv_cmp_ne_u32 vcc, 0, v3\ns_cbranch_vccz L_mld")
    loop("L_mlp")
    A("L_mld:\nv_mov_b32 v24, v28")
    for c in RED8: A(f"s_nop 1\nv_max_f32_dpp v24, v24, v24 {c} {DPPF}")
    A("v_sub_f32 v25, v28, v24\nv_exp_f32 v25, v25\ns_nop 0\nv_mul_f32 v25, v30, v25")
    for c in RED8: A(f"s_nop 1\nv_add_f32_dpp v25, v25, v25 {c} {DPPF}")
    A("v_rcp_f32 v25, v25\nv_sub_f32 v24, v16, v24\nv_exp_f32 v24, v24\ns_nop 0\nv_mul_f32 v24, v24, v25")
    for w in range(4): A(f"v_mul_f32 v{28+2*w}, v{20+w}, v24\nv_mov_b32 v{29+2*w}, s63")
    A(f"ds_write_b128 v9, v[28:31] offset:{WF}\nds_write_b128 v9, v[32:35] offset:{WF+16}\ns_waitcnt lgkmcnt(0)")
    stamp(10)
    late_loads(True)
    A("s_barrier")
    A("L_tail:")
    stamp(7)
    if omerge:
        A("s_cmp_eq_u32 s35, 3\ns_cbranch_scc0 L_nom")
        for w in range(4): A(f"ds_read_b128 {vr(52+4*w)}, v75 offset:{OP+512*w}")
        A("s_waitcnt lgkmcnt(2)")
        for r in range(4): A(f"v_add_f32 v{52+r}, v{52+r}, v{56+r}")
        A("s_waitcnt lgkmcnt(0)")
        for r in range(4): A(f"v_add_f32 v{60+r}, v{60+r}, v{64+r}")
        for r in range(4): A(f"v_add_f32 v{52+r}, v{52+r}, v{60+r}")
        for r in range(4): tag(52+r, 27)
        A("s_mov_b32 exec_hi, 0")
        store2("s59", ["global_store_dwordx4 v6, v[52:55], s[26:27]"])
        exall()
        A("L_nom:")
    if ofirst: A(f"s_sleep {ofirst}")
    if NPO > 1: ppoll("L_op", NPO, [7, 6], 32, 112, ldl, ogap, 26)
    else:
        if "rtt" in diag: A("s_mov_b32 s95, 0")
        A("s_mov_b32 s42, 1\nL_oxc:")
        if "rtt" in diag: stamp(1); A("s_add_u32 s95, s95, 1")
        assert omerge
        load2("s59", ["global_load_dwordx4 v[32:35], v7, s[26:27]"])
        A("s_waitcnt vmcnt(0)\ns_cmp_eq_u32 s42, 0\ns_cbranch_scc1 L_nowd\ns_mov_b32 s42, 0")
        for rq in range(5): A(f"v_mfma_f32_16x16x32_bf16 v[44:47], {vr(HA+4*rq)}, {vr(WD+4*rq)}, {'0' if rq == 0 else 'v[44:47]'}")
        A("s_cmp_eq_u32 s35, 3\ns_cbranch_scc0 L_nowd")
        for rq in range(5): A(f"v_mfma_f32_16x16x32_bf16 v[48:51], {vr(HA+4*rq)}, {vr(WD+20+4*rq)}, {'0' if rq == 0 else 'v[48:51]'}")
        A("L_nowd:")
        if "rtt" in diag: stamp(2); A("s_waitcnt lgkmcnt(0)\ns_mov_b32 s70, s95\ns_mov_b32 s71, 0")
        check(list(range(32, 36 if omerge else 40)), 26)
        A("s_and_b64 exec, exec, vcc\ns_cbranch_execz L_oxd")
        if osleep: A(f"s_sleep {osleep}")
        loop("L_oxc")
        A("L_oxd:"); exall()
    stamp(8)
    if not omerge:
        for r in range(4): A(f"v_add_f32 v{32+r}, v{32+r}, v{36+r}")
    else: A("s_nop 0")
    for c in (RED8 if omerge else RED16):
        for r in range(4): A(f"v_add_f32_dpp v{32+r}, v{32+r}, v{32+r} {c} {DPPF}")
    for r in range(4): A(f"v_cvt_pk_bf16_f32 v{32+r}, v{32+r}, v{32+r}")
    for r in range(4): hands(32+r, AOP+4*r)
    A("s_nop 0")
    for rq in range(4): A(f"v_mfma_f32_16x16x32_bf16 v[44:47], {vr(AOP+4*rq)}, {vr(WO+4*rq)}, v[44:47]")
    A("s_cmp_eq_u32 s35, 3\ns_cbranch_scc0 L_y1")
    for rq in range(4): A(f"v_mfma_f32_16x16x32_bf16 v[48:51], {vr(AOP+4*rq)}, {vr(WO+16+4*rq)}, v[48:51]")
    A("L_y1:\ns_mov_b32 exec_hi, 0\ns_nop 4")
    for r in range(4): tag(44+r, 27)
    A(f"global_store_dwordx4 v5, v[44:47], s[26:27]{WT}\ns_cbranch_scc0 L_y3\ns_and_b32 exec_lo, s98, 0x00ff00ff")
    for r in range(4): tag(48+r, 27)
    A(f"global_store_dwordx4 v5, v[48:51], s[26:27] offset:512{WT}\nL_y3:"); exall()
    stamp(9)
    final()
    A("L_hC:")
    tail_setup(False)
    late_loads(False)
    A("s_barrier\ns_branch L_tail")

    A("L_s2:")
    masks()
    S = 60
    A("v_lshlrev_b32 v2, 4, v0")
    A("v_and_b32 v3, 3, v10\nv_lshl_add_u32 v3, v11, 2, v3\nv_lshlrev_b32 v3, 4, v3")
    A("s_mov_b32 s52, 0x000f000f\ns_mov_b32 s53, 0x000f000f\ns_mov_b32 s54, 0x00f000f0\ns_mov_b32 s55, 0x00f000f0")
    A("s_mov_b32 s56, 0x0f000f00\ns_mov_b32 s57, 0x0f000f00\ns_mov_b32 s58, 0xf000f000\ns_mov_b32 s59, 0xf000f000")
    A(f"s_mov_b32 s60, {SCALE:#x}\ns_mov_b32 s61, {LOG2E:#x}\nv_mov_b32 v52, 0xff800000")
    if omerge: A("s_lshl_b32 s40, s28, 9")
    else: A(f"s_lshl_b32 s40, s31, 2\ns_add_u32 s40, s40, s28\ns_lshl_b32 s40, s40, 9\ns_add_u32 s40, s40, {OX}")
    A(f"v_lshlrev_b32 v57, 5, v10\nv_lshl_add_u32 v57, v11, 4, v57\nv_add_u32 v57, s40, v57")
    A("s_lshl_b32 s41, s28, 4\nv_mov_b32 v58, s41\ns_lshl_b32 s41, s28, 3\nv_mov_b32 v9, s41\nv_mov_b32 v8, 0")
    while issued[0] < R0:
        A(f"s_waitcnt vmcnt({P-1})"); issue_unit()
    stamp(1)
    A("s_barrier")
    stamp(2)
    A(f"ds_read_b128 v[4:7], v3 offset:{QL}\nds_read_b32 v8, v8 offset:{WF+32}")
    A("s_waitcnt lgkmcnt(0)")
    for u in range(4):
        for w in range(4): A(f"v_cndmask_b32 v{16+4*u+w}, 0, v{4+w}, s[{52+2*u}:{53+2*u}]")
    A("v_mov_b32 v53, 0\nv_readfirstlane_b32 s42, v8")
    epoch_use()
    A("v_mov_b32 v59, s43")
    if fb is not None:
        assert RING >= 96
        A(f"v_mov_b32 v8, 0\ns_lshl_b32 s41, s28, 2\nv_mov_b32 v3, s41\ns_mov_b32 s41, {Linit}")
    def post(i):
        d = 32 + 4*(i & 1); t = S + i
        A(f"v_mov_b32_dpp v{t}, v{d} quad_perm:[0,0,0,0] {DPPF}\nv_mov_b32_dpp v55, v{d+2} quad_perm:[2,2,2,2] {DPPF}\ns_nop 0")
        A(f"v_add_f32_dpp v{t}, v{d+1}, v{t} quad_perm:[1,1,1,1] {DPPF}\nv_add_f32_dpp v55, v{d+3}, v55 quad_perm:[3,3,3,3] {DPPF}")
        A(f"v_add_f32 v{t}, v{t}, v55")
        if i & 1:
            a, b = t-1, t
            A(f"v_cvt_pk_bf16_f32 v56, v{a}, v{b}\nv_lshlrev_b32 v{a}, 16, v56\nv_and_b32 v{b}, 0xffff0000, v56")
            A(f"v_mul_f32 v{a}, s60, v{a}\nv_mul_f32 v{b}, s60, v{b}")
            A(f"v_cvt_pk_bf16_f32 v56, v{a}, v{b}\nv_lshlrev_b32 v{a}, 16, v56\nv_and_b32 v{b}, 0xffff0000, v56")
            A(f"v_max3_f32 v52, v52, v{a}, v{b}")
    since = [0]; extra = [0]
    def throttle():
        ph = issued[0] % 4; t = lab("t")
        for d in range(Dhi-1, Dlo-1, -1):
            A(f"s_cmp_ge_u32 s41, {4*(d+1)-ph}\ns_cbranch_scc1 {t}\ns_waitcnt vmcnt({d-1 + (1 if issued[0]-d < extra[0] else 0)})")
        A(f"{t}:")
    def fb_hooks():
        n = issued[0]
        pts = list(fb)
        if n == ktrig: A(f"v_mov_b32 v56, 100\nds_write_b32 v3, v56 offset:{PR+16}")
        if n in pts: A(f"v_mov_b32 v56, {pts.index(n)}\nds_write_b32 v3, v56 offset:{PR}")
        if n % 8 == 0: A(f"ds_read_b32 v11, v8 offset:{LV}")
        if n % 8 == 2: A("s_waitcnt lgkmcnt(0)\nv_readfirstlane_b32 s41, v11")
    def after_consume(k):
        since[0] += 1
        if fb is not None:
            if issued[0] < 256 and issued[0] - R <= k and (issued[0] - (k+1) < Dhi or since[0] >= cu):
                if issued[0] - (k+1) >= Dhi: A(f"s_waitcnt vmcnt({Dhi-1})")
                throttle(); issue_unit(); since[0] = 0; fb_hooks()
            return
        while issued[0] < 256 and issued[0] - R <= k:
            lag = issued[0] - (k+1)
            Dk = D if issued[0] < 128 else DV
            Dk = int(Dk*(k+1) + 1e-9) - int(Dk*k + 1e-9)
            if lag < Dk: issue_unit(); since[0] = 0
            elif since[0] >= cu:
                A(f"s_waitcnt vmcnt({Dk-1})"); issue_unit(); since[0] = 0; break
            else: break
    for k in range(128):
        i, a = divmod(k, 4); d = 32 + 4*(i & 1)
        A(f"s_waitcnt vmcnt({issued[0]-k-1})")
        c = "0" if a == 0 else vr(d)
        A(f"v_mfma_f32_16x16x32_bf16 {vr(d)}, {vr(RING+4*(k%R))}, {vr(16+4*a)}, {c}")
        after_consume(k)
        if a == 3 and i > 0: post(i-1)
    A("s_nop 7")
    post(31)
    stamp(3)
    R4 = ("row_ror:4 "+DPPF, "row_ror:8 "+DPPF, "row_bcast:15 row_mask:0xa bank_mask:0xf", "row_bcast:31 row_mask:0xc bank_mask:0xf")
    for c in R4: A(f"s_nop 1\nv_max_f32_dpp v52, v52, v52 {c}")
    A("s_nop 0\nv_readlane_b32 s62, v52, 63\ns_nop 1\nv_mov_b32 v54, s62\nv_mul_f32 v54, s61, v54")
    def expo(i):
        A(f"v_fma_f32 v{S+i}, v{S+i}, s61, -v54\nv_fma_f32 v{S+i+1}, v{S+i+1}, s61, -v54")
        A(f"v_exp_f32 v{S+i}, v{S+i}\nv_exp_f32 v{S+i+1}, v{S+i+1}\ns_nop 0")
        A(f"v_add_f32 v53, v53, v{S+i}\nv_cvt_pk_bf16_f32 v{S+i}, v{S+i}, v{S+i}")
        A(f"v_add_f32 v53, v53, v{S+i+1}\nv_cvt_pk_bf16_f32 v{S+i+1}, v{S+i+1}, v{S+i+1}")
    expo(0)
    A("s_nop 1")
    def ands(k):
        i, a = divmod(k, 4); o = 44 + 4*(k & 1)
        for w in range(4): A(f"v_and_b32_dpp v{o+w}, v{S+i}, v{12+w} row_newbcast:{4*a} {DPPF}")
    ands(0)
    for k in range(128):
        i, a = divmod(k, 4); n = 128 + k; o = 44 + 4*(k & 1)
        if k % 2 == 0 and 2 + k < 32: expo(2 + k)
        if k == kml:
            for c in R4: A(f"s_nop 1\nv_add_f32_dpp v53, v53, v53 {c}")
            A(f"v_mov_b32 v4, v54\nv_mov_b32 v5, s63\nv_mov_b32 v6, v53\nv_mov_b32 v7, s63\ns_mov_b32 exec_lo, 0\ns_mov_b32 exec_hi, 0x80000000")
            A(f"ds_write_b128 v58, v[4:7] offset:{ML4}\ns_mov_b64 exec, -1")
        if k == kwf: A(f"ds_read_b64 v[4:5], v9 offset:{WF}")
        if k == kpre:
            assert RING >= 96
            for r in range(4): A(f"v_not_b32 v{92+r}, v59")
            A("s_mov_b32 exec_hi, 0")
            store2("s42", ["global_store_dwordx4 v57, v[92:95], s[26:27]"])
            A("s_mov_b64 exec, -1")
            extra[0] = issued[0]
        if k + 1 < 128: ands(k+1)
        else: A("s_nop 1")
        A(f"s_waitcnt vmcnt({issued[0]-n-1 + (1 if n < extra[0] else 0)})")
        c = "0" if k == 0 else vr(40)
        A(f"v_mfma_f32_16x16x32_bf16 {vr(40)}, {vr(o)}, {vr(RING+4*(n%R))}, {c}")
        after_consume(n)
    A(f"L_wf:\ns_waitcnt lgkmcnt(0)\nv_cmp_ne_u32 vcc, s63, v5\ns_cbranch_vccz L_wfd\ns_sleep 1\nds_read_b64 v[4:5], v9 offset:{WF}")
    loop("L_wf")
    A("L_wfd:\ns_mov_b32 exec_hi, 0\ns_nop 3")
    for r in range(4): A(f"v_mul_f32 v{40+r}, v{40+r}, v4")
    if omerge:
        A(f"ds_write_b128 v57, v[40:43] offset:{OP}\ns_waitcnt lgkmcnt(0)")
    else:
        for r in range(4): tag(40+r, 59)
        store2("s42", ["global_store_dwordx4 v57, v[40:43], s[26:27]"])
    A("s_mov_b64 exec, -1")
    stamp(4)
    A("s_barrier")
    final_setup()
    A("s_branch L_final")
    A(f""".section .rodata,"a"
.p2align 6
.amdhsa_kernel {NAME}
  .amdhsa_next_free_vgpr 256
  .amdhsa_next_free_sgpr 100
  .amdhsa_accum_offset 256
  .amdhsa_group_segment_fixed_size 0
  .amdhsa_kernarg_size 96
  .amdhsa_user_sgpr_count 2
  .amdhsa_user_sgpr_kernarg_segment_ptr 1
  .amdhsa_system_sgpr_workgroup_id_x 1
.end_amdhsa_kernel""")
    return HEADER + "\n".join(L) + "\n"

if __name__ == "__main__":
    kw = eval("dict(" + (sys.argv[2] if len(sys.argv) > 2 else "") + ")")
    s = gen(**kw)
    open(sys.argv[1], "w").write(s)
    import hazard
    pr = hazard.check(s)
    print("\n".join(pr) if pr else "no hazards")
```

```python
import sys
NAME = "parallel_sum__mha_block_cached__glu_gated_bilinear__decode_kernel"
HEADER = open('parallel_sum__mha_block_cached__glu_gated_bilinear__decode.s.ref').read().split('; Override launch')[0]
QL, FIN, ML4, WF, PR, LV, HB, YB = 0, 256, 512, 576, 640, 672, 704, 1024
OP = YB + 5*1024
LDS_BYTES = OP + 2048
PA, GUG, OX, MLG, QX, EPOCH, STAMP = 0, 0x90000, 0xe0000, 0x160000, 0x170000, 0x190004, 0x300000
FBL, LVG = 0x1a0000, 0x1b0000
LOG2E, SCALE, EPS, INV576 = 0x3fb8aa3b, 0x3db504f3, 0x3727c5ac, 0x3ae38e39
DPPF = "row_mask:0xf bank_mask:0xf"
RED8 = ("quad_perm:[1,0,3,2]", "quad_perm:[2,3,0,1]", "row_half_mirror")
RED16 = ("row_ror:1", "row_ror:2", "row_ror:4", "row_ror:8")
WT = " sc0 sc1"
DOC = """
; ---------------------------------------------------------------------------------------------------------------
;
; ---------------------------------------------------------------------------------------------------------------"""

def gen(R=40, R0=36, P=5, D=5, DV=5.5, cu=2, hD=3, woD=2, kvfl="nt", wfl="nt", stamps=False, grot=1, psleep=0, gsleep=64, osleep=1,
        kml=40, kwf=112, fine=(), qwait=8, diag=(), barD=True, dry=False, local=True, ldl=" sc1", qlocal=True, qto=12, fb=tuple(range(48,240,16)), Dhi=7, Dlo=4, L0=20, G=6, Linit=21, lsleep=32, kpre=None, ofirst=3, pfirst=0, NPO=1, NPA=1, pgap=2, ogap=1, GX=0, X0=0, omerge=True, pld=WT, qld=WT, lfast=' nt', Lpar=0, LV2=0, srot=0, ktrig=256, gwait=1, tsleep=2, tdelay=0, tk=0, kb=999, Db=None, lD=0, gchk=' nt', qfast=' nt', hq=18, tlb=0, tlbv=0, pst=WT, ostore='', gxmask=0xfff, gxoff=0):
    L = []
    def A(s): L.extend(s.split("\n"))
    def fl(x): return (" " + x) if x else ""
    def stamp(i):
        if stamps: A(f"s_memrealtime s[{64+2*i}:{65+2*i}]")
    def vr(b, n=4): return f"v[{b}:{b+n-1}]"
    uid = [0]
    def lab(p):
        uid[0] += 1; return f"L_{p}{uid[0]}"
    def wave_reduce(op, v):
        for c in tuple(x+" "+DPPF for x in RED16) + ("row_bcast:15 row_mask:0xa bank_mask:0xf", "row_bcast:31 row_mask:0xc bank_mask:0xf"):
            A(f"s_nop 1\n{op}_dpp v{v}, v{v}, v{v} {c}")
    def masks():
        A("v_and_b32 v3, 1, v10\nv_lshlrev_b32 v3, 4, v3\nv_mov_b32 v4, 0xffff\nv_lshlrev_b32 v4, v3, v4\nv_bfe_u32 v3, v10, 1, 2")
        for w in range(4):
            A(f"v_cmp_eq_u32 vcc, {w}, v3\ns_nop 1\nv_cndmask_b32 v{12+w}, 0, v4, vcc")
    def epoch_load():
        A(f"s_add_u32 s48, s26, {EPOCH}\ns_addc_u32 s49, s27, 0\ns_load_dword s63, s[48:49], 0")
    def epoch_use():
        A(f"s_add_u32 s63, s63, 9\ns_and_b32 s43, s63, 0x3ff\ns_mov_b32 s51, 0xfffffc00\ns_and_b32 s96, s63, 0xff\ns_mov_b32 s97, 0xffffff00")
    def tag(r, vt, bits=10): A(f"v_and_or_b32 v{r}, v{r}, {'s51' if bits == 10 else 's97'}, v{vt}")
    def ortree(regs, t):
        A(f"v_or3_b32 v{t}, v{regs[0]}, v{regs[1]}, v{regs[2]}")
        rest = regs[3:]
        while len(rest) >= 2: A(f"v_or3_b32 v{t}, v{t}, v{rest[0]}, v{rest[1]}"); rest = rest[2:]
        if rest: A(f"v_or_b32 v{t}, v{t}, v{rest[0]}")
    def check(regs, t, bits=10):
        for r in regs: A(f"v_xor_b32 v{r}, {'s43' if bits == 10 else 's96'}, v{r}")
        ortree(regs, t)
        A(f"v_and_b32 v{t}, {(1 << bits) - 1:#x}, v{t}\nv_cmp_ne_u32 vcc, 0, v{t}")
    def loop(l): A(f"s_sub_u32 s94, s94, 1\ns_cbranch_scc0 {l}")
    def ppoll(lb, NP, addrs, canon, base, flv, gap, tmp):
        n = len(addrs)
        def iss(k):
            for a in range(n): A(f"global_load_dwordx4 {vr(base + 4*(n*k + a))}, v{addrs[a]}, s[26:27]{flv}")
        A("s_mov_b64 s[56:57], exec")
        for k in range(NP - 1):
            iss(k)
            if gap: A(f"s_sleep {gap}")
        A(f"{lb}:")
        for k in range(NP):
            iss((k + NP - 1) % NP)
            A(f"s_waitcnt vmcnt({n*(NP-1)})")
            b = base + 4*n*k
            check(list(range(b, b + 4*n)), tmp)
            A("s_andn2_b64 exec, exec, vcc")
            for r in range(4*n): A(f"v_mov_b32 v{canon+r}, v{b+r}")
            A(f"s_and_b64 s[56:57], s[56:57], vcc\ns_mov_b64 exec, s[56:57]\ns_cbranch_execz {lb}d")
            if gap: A(f"s_sleep {gap}")
        loop(lb)
        A(f"{lb}d:"); exall()
    def store2(flag, insns):
        if not local:
            for i in insns: A(i + WT)
            return
        a, b = lab("sw"), lab("sd")
        A(f"s_cmp_eq_u32 {flag}, 0\ns_cbranch_scc1 {a}")
        for i in insns: A(i)
        A(f"s_branch {b}\n{a}:")
        for i in insns: A(i + WT)
        A(f"{b}:")
    def load2(flag, insns, lfast=lfast):
        a, b = lab("lw"), lab("ld")
        A(f"s_cmp_eq_u32 {flag}, 0\ns_cbranch_scc1 {a}")
        for i in insns: A(i + lfast)
        A(f"s_branch {b}\n{a}:")
        for i in insns: A(i + " sc1")
        A(f"{b}:")
    def hands(src, o, bc=None):
        for w in range(4):
            if bc is None: A(f"v_and_b32 v{o+w}, v{src}, v{12+w}")
            else: A(f"v_and_b32_dpp v{o+w}, v{src}, v{12+w} row_newbcast:{bc} {DPPF}")
    def norm(r):
        A(f"v_lshlrev_b32 v{r}, 16, v{r}\nv_sub_f32 v{r}, v{r}, v45\nv_cvt_pk_bf16_f32 v{r}, v{r}, v{r}\nv_lshlrev_b32 v{r}, 16, v{r}\nv_mul_f32 v{r}, v{r}, v46\nv_cvt_pk_bf16_f32 v{r}, v{r}, v{r}")
    def layernorm():
        for k in range(8):
            A(f"v_lshlrev_b32 v{28+2*k}, 16, v{16+k}\nv_and_b32 v{29+2*k}, 0xffff0000, v{16+k}")
        for k in range(8): A(f"v_add_f32 v{48+k}, v{28+k}, v{36+k}")
        for st in (4, 2):
            for k in range(st): A(f"v_add_f32 v{48+k}, v{48+k}, v{48+k+st}")
        A("v_add_f32 v44, v48, v49")
        wave_reduce("v_add_f32", 44)
        A(f"s_nop 0\nv_readlane_b32 s40, v44, 63\ns_nop 1\nv_mov_b32 v45, s40\nv_mul_f32 v45, {INV576:#x}, v45")
        for k in range(16): A(f"v_sub_f32 v{48+k}, v{28+k}, v45")
        A("v_mul_f32 v44, v48, v48\nv_mul_f32 v47, v49, v49")
        for k in range(2, 8, 2): A(f"v_fmac_f32 v44, v{48+k}, v{48+k}\nv_fmac_f32 v47, v{49+k}, v{49+k}")
        A("s_mov_b64 exec, 0xff")
        for k in range(8, 16, 2): A(f"v_fmac_f32 v44, v{48+k}, v{48+k}\nv_fmac_f32 v47, v{49+k}, v{49+k}")
        A("s_mov_b64 exec, -1\nv_add_f32 v44, v44, v47")
        wave_reduce("v_add_f32", 44)
        A(f"s_nop 0\nv_readlane_b32 s40, v44, 63\ns_nop 1\nv_mov_b32 v46, s40\nv_mul_f32 v46, {INV576:#x}, v46")
        A(f"v_cvt_pk_bf16_f32 v46, v46, v46\nv_lshlrev_b32 v46, 16, v46\nv_add_f32 v46, {EPS:#x}, v46")
        A("v_cvt_pk_bf16_f32 v46, v46, v46\nv_lshlrev_b32 v46, 16, v46\nv_sqrt_f32 v46, v46\ns_nop 0")
        A("v_cvt_pk_bf16_f32 v46, v46, v46\nv_lshlrev_b32 v46, 16, v46\nv_rcp_f32 v46, v46")
        A("v_cvt_pk_bf16_f32 v45, v45, v45\nv_lshlrev_b32 v45, 16, v45")
    def xload():
        A("s_mul_i32 s40, s30, 144\nv_lshl_add_u32 v2, v11, 1, s40\nv_lshl_add_u32 v2, v10, 3, v2")
        A("s_mov_b32 s36, s4\ns_mov_b32 s37, s5\ns_mov_b32 s38, 1152\ns_mov_b32 s39, 0x20000")
        A("buffer_load_dwordx4 v[16:19], v1, s[36:39], 0 offen\nbuffer_load_dwordx4 v[20:23], v1, s[36:39], 0 offen offset:1024")
        A("buffer_load_ushort v24, v2, s[36:39], 0 offen\nbuffer_load_ushort v25, v2, s[36:39], 0 offen offset:128")
    def owntag(dst):
        A(f"s_getreg_b32 {dst}, hwreg(HW_REG_XCC_ID)\ns_and_b32 {dst}, {dst}, 7\ns_and_b32 s40, s63, 0xf8\ns_or_b32 {dst}, {dst}, s40")
    BIG = 112; AOP = 80
    def ex(lo, hi): A(f"s_and_b32 exec_lo, s98, {lo}\ns_and_b32 exec_hi, s98, {hi}")
    def exall(): A("s_mov_b64 exec, s[98:99]")
    OSRD = "s[84:87]" if not stamps else "s[52:55]"
    def final_setup():
        o = 84 if not stamps else 52
        A(f"v_and_b32 v73, 31, v0\ns_lshl_b32 s40, s28, 5\nv_add_u32 v73, s40, v73")
        A(f"v_lshrrev_b32 v74, 5, v0\nv_mul_u32_u24 v68, 2304, v73\nv_lshl_add_u32 v68, v74, 4, v68\ns_min_u32 s41, s2, 71\ns_lshl_b32 s40, s41, 5\nv_add_u32 v68, s40, v68")
        A(f"s_lshl_b32 s40, s41, 4\nv_lshl_add_u32 v69, v0, 1, s40\nv_lshlrev_b32 v70, 2, v0\ns_lshl_b32 s40, s28, 5\nv_lshl_add_u32 v71, v74, 4, s40")
        A(f"s_mov_b32 s36, s4\ns_mov_b32 s37, s5\ns_mov_b32 s38, 1152\ns_mov_b32 s39, 0x20000\ns_mov_b32 s{o}, s22\ns_mov_b32 s{o+1}, s23\ns_mov_b32 s{o+2}, 1152\ns_mov_b32 s{o+3}, 0x20000")
        A("buffer_load_ushort v72, v69, s[36:39], 0 offen\ns_mov_b32 s98, -1\ns_mov_b32 s99, -1")
    def final():
        A("; ---- final: 72 workgroups add the 256 partial rows for 8 columns each ----\nL_final:")
        A(f"s_cmp_ge_u32 s2, 72\ns_cbranch_scc1 L_fin0")
        if barD: A("s_cmp_eq_u32 s98, 0\ns_cbranch_scc1 L_pa\ns_barrier")
        A("L_pa:")
        if pfirst: A(f"s_sleep {pfirst}")
        if NPA > 1: ppoll("L_pp", NPA, [68], 76, 52, WT, pgap, 73)
        else:
            A(f"L_pa1:\nglobal_load_dwordx4 v[76:79], v68, s[26:27]{pld}\ns_waitcnt vmcnt(0)")
            check([76, 77, 78, 79], 73)
            A(f"s_and_b64 exec, exec, vcc\ns_cbranch_execz L_da")
            if psleep: A(f"s_sleep {psleep}")
            loop(f"L_pa1")
            A(f"L_da:"); exall()
        stamp(11)
        for c in tuple(x+" "+DPPF for x in RED16) + ("row_bcast:15 row_mask:0xa bank_mask:0xf",):
            for r in range(4): A(f"v_add_f32_dpp v{76+r}, v{76+r}, v{76+r} {c}")
        ex("0x80000000", "0x80000000")
        A(f"ds_write_b128 v71, v[76:79] offset:{FIN}\ns_waitcnt lgkmcnt(0)\ns_cmp_eq_u32 s98, 0\ns_cbranch_scc1 L_out\ns_barrier")
        stamp(12)
        A(f"s_cmp_lg_u32 s28, 0\ns_cbranch_scc1 L_ep")
        A("L_out:"); ex("0xff", "0")
        if NPA > 1: A("s_nop 0")
        for v in range(4): A(f"ds_read2_b32 v[{32+2*v}:{33+2*v}], v70 offset0:{FIN//4+16*v} offset1:{FIN//4+16*v+8}")
        A("v_lshlrev_b32 v72, 16, v72\ns_waitcnt lgkmcnt(0)")
        for st in (4, 2, 1):
            for k in range(st): A(f"v_add_f32 v{32+k}, v{32+k}, v{32+k+st}")
        A("v_add_f32 v32, v72, v32\nv_cvt_pk_bf16_f32 v32, v32, v32")
        A(f"buffer_store_short v32, v69, {OSRD}, 0 offen{ostore}")
        A("L_fin0:")
        if dry: A("s_cmp_eq_u32 s98, 0\ns_cbranch_scc1 L_real")
        A("s_branch L_fin\nL_ep:")
        A(f"s_cmp_lg_u32 s2, 0\ns_cbranch_scc1 L_fin\ns_cmp_lg_u32 s28, 4\ns_cbranch_scc1 L_fin")
        A(f"s_mov_b64 exec, 1\nv_mov_b32 v3, {EPOCH:#x}\nv_mov_b32 v4, s63\nglobal_store_dword v3, v4, s[26:27]{WT}")
        A(f"L_fin:")
        if stamps:
            A("s_waitcnt vmcnt(0)\ns_memrealtime s[90:91]\ns_getreg_b32 s92, hwreg(HW_REG_XCC_ID)\ns_mov_b32 s93, 0\ns_waitcnt lgkmcnt(0)")
            A(f"s_lshl_b32 s40, s2, 3\ns_add_u32 s40, s40, s28\ns_lshl_b32 s40, s40, 7\ns_add_u32 s40, s40, {STAMP}\ns_mov_b64 exec, 1\nv_mov_b32 v6, s40")
            for i in range(15):
                A(f"v_mov_b32 v8, s{64+2*i}\nv_mov_b32 v9, s{65+2*i}\nglobal_store_dwordx2 v6, v[8:9], s[26:27] offset:{8*i}")
        if "dbg" in diag:
            A("s_mov_b64 exec, 1\nv_mov_b32 v6, 0\ns_not_b32 s40, s64\nv_mov_b32 v8, s40\nglobal_atomic_umax v6, v8, s[24:25] sc1\nv_mov_b32 v8, s64\nglobal_atomic_umax v6, v8, s[24:25] offset:4 sc1\nv_mov_b32 v8, s90\nglobal_atomic_umax v6, v8, s[24:25] offset:8 sc1")
            A("s_cmp_lt_u32 s28, 4\ns_cbranch_scc0 L_end\nv_mov_b32 v8, s72\nglobal_atomic_umax v6, v8, s[24:25] offset:12 sc1\ns_not_b32 s40, s72\nv_mov_b32 v8, s40\nglobal_atomic_umax v6, v8, s[24:25] offset:16 sc1\nv_mov_b32 v8, s70\nglobal_atomic_umax v6, v8, s[24:25] offset:20 sc1\nv_mov_b32 v8, s68\nglobal_atomic_umax v6, v8, s[24:25] offset:24 sc1")
        A(f"L_end:\ns_endpgm")

    A(f"; @launch grid=(256,1,1) block=(512,1,1) lds={LDS_BYTES}")
    A(DOC.strip("\n"))
    A('.amdgcn_target "amdgcn-amd-amdhsa--gfx950"\n.text')
    A(f".globl {NAME}\n.p2align 8\n.type {NAME},@function\n{NAME}:")
    stamp(0)
    A("s_cmp_ge_u32 s2, 256\ns_cbranch_scc1 L_end")
    A("s_load_dwordx16 s[4:19], s[0:1], 0\ns_load_dwordx8 s[20:27], s[0:1], 64")
    A("v_lshrrev_b32 v1, 6, v0\nv_and_b32 v0, 63, v0")
    A("s_and_b32 s33, s2, 7\ns_lshr_b32 s34, s2, 3")
    A("v_readfirstlane_b32 s28, v1")
    A("s_lshl_b32 s31, s33, 5\ns_add_u32 s31, s31, s34\ns_lshr_b32 s29, s31, 3\ns_and_b32 s30, s31, 7")
    A("v_lshrrev_b32 v11, 4, v0\nv_and_b32 v10, 15, v0")
    A("s_mov_b32 s94, 0x40000\ns_cmp_lt_u32 s28, 4\ns_cbranch_scc0 L_hstart")
    RING = 256 - 4*R
    assert RING >= 92 and R % 4 == 0 and R0 <= R
    A("v_bfe_u32 v1, v0, 2, 2\nv_lshlrev_b32 v1, 8, v1\nv_lshl_add_u32 v1, v11, 6, v1\nv_and_b32 v3, 3, v0\nv_lshl_add_u32 v1, v3, 4, v1")
    A(f"s_lshl_b32 s40, s29, 22")
    A(f"s_mul_i32 s50, s29, {grot*0x20000}\ns_lshl_b32 s41, s30, 14\ns_add_u32 s50, s50, s41\ns_lshl_b32 s41, s28, 12\ns_add_u32 s50, s50, s41\ns_and_b32 s50, s50, 0x3fffff")
    A("s_mov_b32 s38, 0x400000\ns_mov_b32 s39, 0x20000\ns_mov_b32 s46, 0x400000\ns_mov_b32 s47, 0x20000")
    A("s_waitcnt lgkmcnt(0)")
    A("s_add_u32 s36, s6, s40\ns_addc_u32 s37, s7, 0\ns_add_u32 s44, s8, s40\ns_addc_u32 s45, s9, 0")
    issued = [0]
    def issue_unit():
        n = issued[0]; a = n % 4
        A(f"buffer_load_dwordx4 {vr(RING + 4*(n % R))}, {'v1' if n < 128 else 'v2'}, {'s[36:39]' if n < 128 else 's[44:47]'}, s50 offen offset:{1024*a}{fl(kvfl)}")
        if a == 3:
            if srot: A(f"s_add_u32 s95, s50, {srot*0x1000}\ns_and_b32 s95, s95, 0x1ffff\ns_add_u32 s50, s50, 0x20000\ns_and_b32 s50, s50, 0x3e0000\ns_or_b32 s50, s50, s95")
            else: A("s_add_u32 s50, s50, 0x20000\ns_and_b32 s50, s50, 0x3fffff")
        issued[0] += 1
        if issued[0] in fine: stamp(5 + list(fine).index(issued[0]))
    for n in range(min(P, R0)): issue_unit()
    epoch_load()
    A("s_branch L_s2")

    A("L_hstart:")
    A("s_sub_u32 s35, s28, 4\nv_lshlrev_b32 v1, 4, v0\nv_and_b32 v8, 7, v10")
    A("s_cmp_eq_u32 s35, 0\ns_cbranch_scc0 L_h123")
    A("s_mul_i32 s40, s30, 589824\ns_lshl_b32 s41, s29, 8\ns_add_u32 s40, s40, s41")
    A("v_lshlrev_b32 v7, 13, v11\nv_lshl_add_u32 v7, v10, 4, v7\nv_add_u32 v7, s40, v7")
    A("s_mov_b32 s46, 4718592\ns_mov_b32 s47, 0x20000\ns_mov_b32 s42, 0")
    A("s_waitcnt lgkmcnt(0)")
    xload()
    A("s_mov_b32 s44, s10\ns_mov_b32 s45, s11")
    def wq_issue(u):
        A(f"buffer_load_dwordx4 {vr(BIG+4*u)}, v7, s[44:47], s42 offen{fl(wfl)}")
        if u < 17: A("s_add_u32 s42, s42, 0x8000")
    for u in range(hq): wq_issue(u)
    epoch_load()
    stamp(1)
    masks()
    A(f"v_lshlrev_b32 v5, 5, v10\nv_lshl_add_u32 v5, v11, 4, v5\ns_lshl_b32 s40, s31, 9\ns_add_u32 s40, s40, {QX}\nv_add_u32 v5, s40, v5")
    A(f"s_lshl_b32 s40, s29, 12\ns_add_u32 s40, s40, {QX}\nv_add_u32 v6, s40, v1")
    if fb is not None: A(f"v_mov_b32 v9, 0\nv_mov_b32 v3, -1\nds_write_b32 v9, v3 offset:{PR}\nds_write_b32 v9, v3 offset:{PR+16}\nv_mov_b32 v3, {Linit}\nds_write_b32 v9, v3 offset:{LV}")
    A(f"s_waitcnt vmcnt({hq+2})")
    layernorm()
    A(f"s_waitcnt vmcnt({hq}) lgkmcnt(0)")
    epoch_use()
    for t in range(2): norm(24+t)
    stamp(2)
    owntag("s58")
    A("v_mov_b32 v27, s58")
    hands(24, AOP, 0)
    for u in range(18):
        if u + 1 < 18: hands(24 + ((u+1) >> 4), AOP + 4*((u+1) & 1), (u+1) & 15)
        else: A("s_nop 1")
        A(f"s_waitcnt vmcnt({min(18, hq+u)-u-1})")
        c = "0" if u == 0 else vr(64)
        A(f"v_mfma_f32_16x16x32_bf16 {vr(64)}, {vr(AOP+4*(u&1))}, {vr(BIG+4*u)}, {c}")
        if hq + u < 18: wq_issue(hq + u)
    A("s_mov_b32 exec_hi, 0\ns_nop 6")
    for r in range(4): tag(64+r, 27, 8)
    A(f"global_store_dwordx4 v5, v[64:67], s[26:27]{'' if qlocal else WT}\ns_mov_b64 exec, -1\ns_mov_b32 s41, {qto}")
    stamp(3)
    if qwait: A(f"s_sleep {qwait}")
    A("L_qpoll:")
    if qlocal: load2("s41", [f"global_load_dwordx4 {vr(BIG+4*p)}, v6, s[26:27] offset:{1024*p}" for p in range(4)], qfast)
    else:
        for p in range(4): A(f"global_load_dwordx4 {vr(BIG+4*p)}, v6, s[26:27] offset:{1024*p}{qld}")
    A("s_waitcnt vmcnt(0)")
    for r in range(BIG, BIG+16): A(f"v_xor_b32 v{r}, s58, v{r}")
    ortree(list(range(BIG, BIG+16)), 3)
    A("v_and_b32 v4, 0xf8, v3\nv_cmp_ne_u32 vcc, 0, v4\ns_cbranch_vccz L_qdone")
    if qlocal:
        A("s_sleep 4\ns_cmp_eq_u32 s41, 0\ns_cbranch_scc1 L_qpoll3\ns_sub_u32 s41, s41, 1\ns_cmp_lg_u32 s41, 0\ns_cbranch_scc1 L_qpoll2\nbuffer_wbl2 sc1\ns_waitcnt vmcnt(0)")
        A("L_qpoll3:\nbuffer_inv sc1\ns_waitcnt vmcnt(0)\nL_qpoll2:")
    loop("L_qpoll")
    A("L_qdone:\nv_and_b32 v4, 7, v3\nv_cmp_ne_u32 vcc, 0, v4")
    for r in range(BIG, BIG+16): A(f"v_and_b32 v{r}, s97, v{r}")
    A("s_cmp_eq_u64 vcc, 0\ns_cselect_b32 s40, 1, 0")
    if qlocal: A("s_cbranch_scc1 L_qloc\nbuffer_wbl2 sc1\ns_waitcnt vmcnt(0)\nL_qloc:")
    for r in range(4): A(f"v_add_f32 v{BIG+r}, v{BIG+r}, v{BIG+4+r}\nv_add_f32 v{BIG+8+r}, v{BIG+8+r}, v{BIG+12+r}")
    for r in range(4): A(f"v_add_f32 v{BIG+r}, v{BIG+r}, v{BIG+8+r}")
    for r in range(4): A(f"v_mov_b32 v{BIG+4+r}, v{BIG+r}")
    A("v_and_b32 v4, 31, v0\nv_lshlrev_b32 v4, 3, v4")
    for r in range(4): A(f"v_permlane32_swap_b32 v{BIG+4+r}, v{BIG+r}")
    for r in range(4): A(f"v_add_f32 v{BIG+r}, v{BIG+4+r}, v{BIG+r}")
    A(f"v_cvt_pk_bf16_f32 v{BIG+8}, v{BIG}, v{BIG+1}\nv_cvt_pk_bf16_f32 v{BIG+9}, v{BIG+2}, v{BIG+3}\nds_write_b64 v4, v[{BIG+8}:{BIG+9}] offset:{QL}")
    A(f"v_mov_b32 v3, s40\nv_mov_b32 v4, 0\nds_write_b32 v4, v3 offset:{WF+32}\ns_waitcnt lgkmcnt(0)")
    stamp(4)
    A("s_barrier")
    if fb:
        A(f"v_mov_b32 v9, 0\ns_lshl_b32 s40, s33, 8\ns_add_u32 s40, s40, {FBL}\nv_lshl_add_u32 v5, v0, 2, s40\ns_add_u32 s46, s40, 128\nv_mov_b32 v7, s46\ns_lshl_b32 s42, s34, 2\ns_add_u32 s40, s40, s42\nv_mov_b32 v6, s40")
        A(f"s_lshl_b32 s40, s33, 7\ns_add_u32 s40, s40, {LVG}\nv_mov_b32 v26, s40\nv_lshlrev_b32 v2, 7, v0\nv_add_u32 v2, {LVG:#x}, v2")
        A(f"s_mov_b32 s41, 0\ns_lshl_b32 s44, s63, 5\ns_and_b32 s60, s58, 1\ns_mul_i32 s60, s60, {Lpar}")
        A(f"L_fb:\nds_read_b32 v3, v9 offset:{PR}\ns_waitcnt lgkmcnt(0)\nv_readfirstlane_b32 s40, v3\ns_cmp_ge_i32 s40, s41\ns_cbranch_scc1 L_fb2\ns_sleep 4")
        A("s_sub_u32 s94, s94, 1\ns_cbranch_scc0 L_fb\ns_branch L_hC")
        A(f"L_fb2:\ns_add_u32 s45, s44, s41\nv_mov_b32 v4, s45\ns_mov_b32 exec_hi, {1 if GX else 0}\nglobal_load_dword v3, v5, s[26:27] nt\ns_mov_b64 exec, 1\nglobal_store_dword v6, v4, s[26:27]")
        A(f"s_mov_b32 exec_lo, -1\ns_waitcnt vmcnt(1)")
        if GX: A(f"v_readlane_b32 s46, v3, 32\ns_sub_u32 s46, s46, s44\ns_cmp_lt_u32 s46, 32\ns_cselect_b32 s46, s46, {X0}")
        A(f"v_sub_u32 v3, v3, v4\nv_cmp_gt_u32 vcc, 32, v3\ns_bcnt1_i32_b64 s42, vcc\ns_mov_b64 exec, 1")
        A(f"s_mul_i32 s40, s42, {G}\ns_lshr_b32 s40, s40, 5\ns_add_u32 s40, s40, {L0}")
        if GX: A("s_add_u32 s40, s40, s46")
        if Lpar: A("s_add_u32 s40, s40, s60")
        if LV2:
            nv = sum(1 for q in fb if q < 152)
            A(f"s_cmp_ge_u32 s41, {nv}\ns_cselect_b32 s46, {LV2}, 0\ns_add_u32 s40, s40, s46")
        A(f"v_mov_b32 v3, s40\nds_write_b32 v9, v3 offset:{LV}")
        if GX:
            A(f"s_sub_u32 s42, s42, 15\ns_cmp_lt_u32 s42, 2\ns_cbranch_scc0 L_fb3\ns_mov_b32 s42, {gxmask}\ns_bitcmp1_b32 s42, s41\ns_cbranch_scc0 L_fb3")
            A(f"s_mov_b64 exec, 0xff\nglobal_load_dword v3, v2, s[26:27]{WT}\ns_mov_b64 exec, 1\nglobal_store_dword v26, v4, s[26:27]{WT}\ns_mov_b64 exec, 0xff\ns_waitcnt vmcnt(1)")
            A(f"v_sub_u32 v3, v3, v4\nv_cmp_gt_u32 vcc, 32, v3\ns_bcnt1_i32_b64 s42, vcc\ns_min_u32 s42, s42, 7\ns_max_u32 s42, s42, {gxoff}\ns_sub_u32 s42, s42, {gxoff}\ns_mul_i32 s42, s42, {GX}\ns_lshr_b32 s42, s42, 3\ns_add_u32 s42, s42, s44\ns_mov_b64 exec, 1\nv_mov_b32 v3, s42\nglobal_store_dword v7, v3, s[26:27]\nL_fb3:")
        A(f"s_mov_b64 exec, -1\ns_add_u32 s41, s41, 1\ns_cmp_lt_u32 s41, {len(fb)}\ns_cbranch_scc1 L_fb")
    A("s_branch L_hC")
    A("L_h123:")
    A("s_waitcnt lgkmcnt(0)")
    epoch_load()
    A("s_cmp_eq_u32 s35, 3\ns_cbranch_scc1 L_h3")
    A("s_and_b32 s56, s29, 3\ns_mov_b32 s57, 1\nv_mov_b32 v9, v10\ns_cmp_eq_u32 s35, 1\ns_cbranch_scc1 L_gu")
    A("s_cmp_eq_u32 s56, 0\ns_mov_b32 s56, 4\ns_mov_b32 s57, 0\nv_mov_b32 v9, v8\ns_cbranch_scc1 L_gu")
    masks()
    A("s_waitcnt lgkmcnt(0)"); epoch_use()
    A("s_barrier\ns_branch L_hC")
    A("L_gu:")
    xload()
    masks()
    A(f"s_waitcnt vmcnt(2)")
    layernorm()
    A(f"s_waitcnt vmcnt(0) lgkmcnt(0)")
    epoch_use()
    for t in range(2): norm(24+t)
    A("s_barrier")
    A("s_mul_i32 s40, s33, 1152\ns_lshl_b32 s41, s56, 8\ns_add_u32 s40, s40, s41")
    A("s_add_u32 s44, s16, s40\ns_addc_u32 s45, s17, 0\ns_sub_u32 s46, 5308416, s40\ns_mov_b32 s47, 0x20000")
    A("s_add_u32 s52, s18, s40\ns_addc_u32 s53, s19, 0\ns_mov_b32 s54, s46\ns_mov_b32 s55, 0x20000")
    A("s_mul_i32 s40, s30, 663552\ns_mov_b32 s42, 9216\nv_mul_lo_u32 v6, v11, s42\nv_lshl_add_u32 v6, v9, 4, v6\nv_add_u32 v6, s40, v6")
    def gu_issue(k):
        u, mat = divmod(k, 2)
        if mat == 0: A(f"s_mov_b32 s42, {4*u*9216}")
        A(f"buffer_load_dwordx4 {vr(BIG+4*k)}, v6, {'s[52:55]' if mat else 's[44:47]'}, s42 offen{fl(wfl)}")
    gi = 0
    while gi < hD: gu_issue(gi); gi += 1
    A("v_mov_b32 v27, s96")
    hands(24, AOP, 0)
    for k in range(36):
        u, mat = divmod(k, 2)
        if mat == 0:
            if u + 1 < 18: hands(24 + ((u+1) >> 4), AOP + 4*((u+1) & 1), (u+1) & 15)
            else: A("s_nop 1")
        A(f"s_waitcnt vmcnt({gi-k-1})")
        d = 64 + 4*mat
        c = "0" if u == 0 else vr(d)
        A(f"v_mfma_f32_16x16x32_bf16 {vr(d)}, {vr(AOP+4*(u&1))}, {vr(BIG+4*k)}, {c}")
        if gi < 36: gu_issue(gi); gi += 1
    owntag("s58")
    A(f"s_lshl_b32 s40, s33, 14\ns_add_u32 s40, s40, {QX}\nv_and_b32 v3, 31, v0\nv_lshl_add_u32 v3, v3, 9, s40\nglobal_load_dwordx4 v[72:75], v3, s[26:27] offset:496{gchk if qlocal else qld}")
    A(f"s_mul_i32 s40, s33, 5\ns_add_u32 s40, s40, s56\ns_lshl_b32 s40, s40, 3\ns_add_u32 s40, s40, s30\ns_lshl_b32 s40, s40, 10\ns_add_u32 s40, s40, {GUG}\nv_lshlrev_b32 v5, 5, v10\nv_lshl_add_u32 v5, v11, 4, v5\nv_add_u32 v5, s40, v5")
    for r in range(8): tag(64+r, 27, 8)
    A("s_waitcnt vmcnt(0)")
    for r in range(72, 76): A(f"v_xor_b32 v{r}, s58, v{r}")
    ortree([72, 73, 74, 75], 4)
    A("v_and_b32 v4, 0xff, v4\nv_cmp_ne_u32 vcc, 0, v4\ns_cmp_eq_u64 vcc, 0\ns_cselect_b32 s59, 1, 0\ns_mov_b32 exec_hi, 0")
    store2("s59", ["global_store_dwordx4 v5, v[64:67], s[26:27]", "global_store_dwordx4 v5, v[68:71], s[26:27] offset:512"])
    A("s_mov_b64 exec, -1")
    stamp(4)
    A("s_cmp_eq_u32 s57, 0\ns_cbranch_scc1 L_hC")
    for _ in range(gwait): A("s_sleep 127")
    A(f"s_mul_i32 s40, s34, 18\nv_add_u32 v3, s40, v11\ns_mul_i32 s40, s33, 40960\ns_add_u32 s40, s40, {GUG}\nv_lshl_add_u32 v7, v8, 10, s40")
    for rq in range(5):
        A(f"v_add_u32 v4, {4*rq}, v3\nv_min_u32 v4, 575, v4\nv_lshrrev_b32 v5, 7, v4\nv_lshl_add_u32 v5, v5, 13, v7\nv_and_b32 v4, 127, v4\nv_lshl_add_u32 v{16+rq}, v4, 2, v5")
    A("L_gpoll:")
    G0 = 28
    load2("s59", [f"global_load_dword v{G0+2*rq+mat}, v{16+rq}, s[26:27] offset:{512*mat}" for rq in range(5) for mat in range(2)])
    A(f"s_waitcnt vmcnt(0)")
    check(list(range(G0, G0+10)), 3, 8)
    A(f"s_cbranch_vccz L_gdone\ns_sleep {gsleep}")
    loop("L_gpoll")
    A("L_gdone:")
    for c in RED8:
        for k in range(10): A(f"v_add_f32_dpp v{G0+k}, v{G0+k}, v{G0+k} {c} {DPPF}")
    for rq in range(5):
        b = G0+2*rq
        A(f"v_cvt_pk_bf16_f32 v{b}, v{b}, v{b+1}\nv_and_b32 v{b+1}, 0xffff0000, v{b}\nv_lshlrev_b32 v{b}, 16, v{b}\nv_mul_f32 v{b}, v{b}, v{b+1}\nv_cvt_pk_bf16_f32 v{b}, v{b}, v{b}")
    A(f"s_mov_b32 exec_lo, 0\nv_mov_b32 v{G0+8}, 0\ns_mov_b64 exec, -1")
    A(f"v_mul_u32_u24 v3, 40, v11\ns_mov_b32 exec_lo, 0x00010001\ns_mov_b32 exec_hi, 0x00010001")
    for rq in range(5): A(f"v_mov_b32 v{G0+2*rq+1}, s63\nds_write_b64 v3, v[{G0+2*rq}:{G0+2*rq+1}] offset:{HB+8*rq}")
    A("s_mov_b64 exec, -1\ns_waitcnt lgkmcnt(0)")
    stamp(5)
    A("s_branch L_hC")
    A("L_h3:")
    if tlb:
        A(f"s_lshl_b32 s40, s29, 22\ns_add_u32 s44, s6, s40\ns_addc_u32 s45, s7, 0\ns_add_u32 s52, s8, s40\ns_addc_u32 s53, s9, 0\ns_lshl_b32 s40, s29, 17")
        A("v_lshl_add_u32 v100, v0, 16, s40\nv_and_b32 v100, 0x3fffff, v100")
        if tlb == 2: A("s_cmp_eq_u32 s30, 0\ns_cbranch_scc0 L_notlb")
        A("global_load_dword v101, v100, s[44:45] nt")
        if tlbv == 1: A("global_load_dword v102, v100, s[52:53] nt")
        A("L_notlb:")
    masks()
    A("s_waitcnt lgkmcnt(0)"); epoch_use()
    A(f"v_mov_b32 v27, s43\ns_not_b32 s40, s63\nv_mov_b32 v3, s40\nv_lshlrev_b32 v4, 2, v10\nds_write_b32 v4, v3 offset:{ML4}\nv_lshlrev_b32 v4, 2, v8\nds_write_b32 v4, v3 offset:{WF}\nv_lshlrev_b32 v4, 2, v0\nds_write_b32 v4, v3 offset:{HB}\ns_waitcnt lgkmcnt(0)\ns_barrier")
    if tlb and tlbv == 2:
        A("s_sleep 127\ns_sleep 127\nglobal_load_dword v102, v100, s[52:53] nt")
    WO = 212
    WD = 112; HA = 192
    def late_loads(h3):
        t = lab("hb")
        A(f"v_mul_u32_u24 v3, 40, v11\n{t}:\ns_sleep 8\nds_read_b64 v[28:29], v3 offset:{HB}\nds_read_b64 v[30:31], v3 offset:{HB+8}\nds_read_b64 v[32:33], v3 offset:{HB+16}\nds_read_b64 v[34:35], v3 offset:{HB+24}\nds_read_b64 v[36:37], v3 offset:{HB+32}\ns_waitcnt lgkmcnt(0)")
        for q in range(5): A(f"v_xor_b32 v{29+2*q}, s63, v{29+2*q}")
        ortree([29, 31, 33, 35, 37], 4)
        A(f"v_cmp_ne_u32 vcc, 0, v4\ns_cbranch_vccz {t}d")
        loop(t)
        A(f"{t}d:")
        for q in range(5): hands(28+2*q, HA+4*q)
        A("s_mul_i32 s40, s31, 18432\ns_add_u32 s44, s12, s40\ns_addc_u32 s45, s13, 0\ns_mov_b32 s46, 18432\ns_mov_b32 s47, 0x20000")
        A("s_mul_i32 s40, s31, 20736\ns_add_u32 s88, s20, s40\ns_addc_u32 s89, s21, 0\ns_mov_b32 s90, 20736\ns_mov_b32 s91, 0x20000" if not stamps else
          "s_mul_i32 s40, s31, 20736\ns_add_u32 s36, s20, s40\ns_addc_u32 s37, s21, 0\ns_mov_b32 s38, 20736\ns_mov_b32 s39, 0x20000")
        DS = "s[88:91]" if not stamps else "s[36:39]"
        A("s_lshl_b32 s40, s35, 8\nv_lshl_add_u32 v28, v10, 4, s40\nv_lshlrev_b32 v29, 4, v8\nv_add_u32 v29, 0x400, v29")
        A("v_mul_u32_u24 v4, 4608, v11\nv_add_u32 v30, v4, v28\nv_add_u32 v31, v4, v29\nv_mul_u32_u24 v4, 1152, v11\nv_add_u32 v28, v4, v28\nv_add_u32 v29, v4, v29")
        A("s_mov_b32 s48, 4608\ns_mov_b32 s49, 9216\ns_mov_b32 s50, 13824\ns_mov_b32 s62, 18432")
        t = lab("tr")
        A(f"{t}:\nds_read_b32 v3, v9 offset:{PR+16}\ns_waitcnt lgkmcnt(0)\nv_readfirstlane_b32 s40, v3\ns_cmp_eq_u32 s40, 100\ns_cbranch_scc1 {t}d\ns_sleep {tsleep}")
        loop(t)
        A(f"{t}d:")
        if tdelay: A(f"s_sleep {tdelay}")
        if tk:
            t2 = lab("tk")
            A(f"ds_read_b32 v3, v9 offset:{LV}\ns_waitcnt lgkmcnt(0)\nv_readfirstlane_b32 s40, v3\ns_sub_u32 s40, {L0+G-1}, s40\ns_min_u32 s40, s40, {G}\ns_mul_i32 s40, s40, {tk}")
            A(f"{t2}:\ns_cmp_eq_u32 s40, 0\ns_cbranch_scc1 {t2}d\ns_sleep 4\ns_sub_u32 s40, s40, 1\ns_branch {t2}\n{t2}d:")
        W_ = f"s_waitcnt vmcnt({lD-1})\n" if lD else ""
        for pb in range(2 if h3 else 1):
            for rq in range(4): A(W_ + f"buffer_load_dwordx4 {vr(WO+16*pb+4*rq)}, v{30+pb}, s[44:47], 0 offen offset:{rq*1152 if rq < 3 else 3456}{fl(wfl)}")
        for pb in range(2 if h3 else 1):
            for rq in range(5): A(W_ + f"buffer_load_dwordx4 {vr(WD+20*pb+4*rq)}, v{28+pb}, {DS}, {('0','s48','s49','s50','s62')[rq]} offen{fl(wfl)}")
        stamp(6)
    def tail_setup(h3):
        if omerge:
            A(f"s_lshl_b32 s40, s29, 12\ns_lshl_b32 s41, s30, 6\ns_add_u32 s40, s40, s41\ns_add_u32 s40, s40, {OX}\nv_lshlrev_b32 v7, 9, v8\nv_lshl_add_u32 v7, v11, 4, v7\nv_add_u32 v7, s40, v7")
            A(f"v_and_b32 v4, 1, v11\nv_lshlrev_b32 v4, 4, v4\nv_lshl_add_u32 v4, v10, 5, v4\ns_lshl_b32 s40, s31, 9\ns_add_u32 s40, s40, {OX}\nv_add_u32 v6, s40, v4\nv_mov_b32 v75, v4")
            A(f"v_mov_b32 v3, 0\nds_read_b32 v3, v3 offset:{WF+32}\ns_waitcnt lgkmcnt(0)\nv_readfirstlane_b32 s59, v3")
        else:
            A(f"s_lshl_b32 s40, s29, 14\ns_lshl_b32 s41, s30, 6\ns_add_u32 s40, s40, s41\ns_add_u32 s40, s40, {OX}\nv_lshlrev_b32 v7, 9, v10\nv_lshl_add_u32 v7, v11, 4, v7\nv_add_u32 v7, s40, v7\nv_add_u32 v6, 0x2000, v7")
        A(f"v_lshlrev_b32 v5, 5, v10\nv_lshl_add_u32 v5, v11, 4, v5\ns_mul_i32 s40, s31, 2304\ns_lshl_b32 s41, s35, 9\ns_add_u32 s40, s40, s41\nv_add_u32 v5, s40, v5\nv_mov_b32 v9, 0")
        A(f"v_mov_b32 v27, s43")
        final_setup()
        A("s_waitcnt vmcnt(0)")
    tail_setup(True)
    if dry: A("s_mov_b32 s98, 0\ns_mov_b32 s99, 0\ns_mov_b64 exec, 0\ns_branch L_tail\nL_real:\ns_mov_b32 s98, -1\ns_mov_b32 s99, -1\ns_mov_b64 exec, -1")
    A("L_m4:\ns_sleep 16")
    for w in range(4): A(f"ds_read_b128 {vr(28+4*w)}, v9 offset:{ML4+16*w}")
    A("s_waitcnt lgkmcnt(0)")
    for w in range(4): A(f"v_xor_b32 v{29+4*w}, s63, v{29+4*w}\nv_xor_b32 v{31+4*w}, s63, v{31+4*w}")
    ortree([29, 31, 33, 35, 37, 39, 41, 43], 3)
    A("v_cmp_ne_u32 vcc, 0, v3\ns_cbranch_vccz L_m4d")
    loop("L_m4")
    A("L_m4d:\nv_max3_f32 v16, v28, v32, v36\nv_max_f32 v16, v16, v40")
    for w in range(4): A(f"v_sub_f32 v{20+w}, v{28+4*w}, v16")
    for w in range(4): A(f"v_exp_f32 v{20+w}, v{20+w}")
    A("v_mov_b32 v17, s63\nv_mov_b32 v19, s63\nv_mul_f32 v18, v30, v20\nv_fmac_f32 v18, v34, v21\nv_fmac_f32 v18, v38, v22\nv_fmac_f32 v18, v42, v23")
    A(f"s_lshl_b32 s40, s31, 7\ns_add_u32 s40, s40, {MLG}\nv_add_u32 v3, s40, v1\ns_mov_b64 exec, 0xff")
    store2("s59", ["global_store_dwordx4 v3, v[16:19], s[26:27]"])
    A(f"s_mov_b64 exec, -1\ns_lshl_b32 s40, s29, 10\ns_add_u32 s40, s40, {MLG}\nv_lshl_add_u32 v4, v8, 7, s40")
    A(f"L_mlp:\ns_sleep 32")
    load2("s59", ["global_load_dwordx4 v[28:31], v4, s[26:27]"])
    A("s_waitcnt vmcnt(0)")
    A("v_xor_b32 v29, s63, v29\nv_xor_b32 v31, s63, v31\nv_or_b32 v3, v29, v31\nv_cmp_ne_u32 vcc, 0, v3\ns_cbranch_vccz L_mld")
    loop("L_mlp")
    A("L_mld:\nv_mov_b32 v24, v28")
    for c in RED8: A(f"s_nop 1\nv_max_f32_dpp v24, v24, v24 {c} {DPPF}")
    A("v_sub_f32 v25, v28, v24\nv_exp_f32 v25, v25\ns_nop 0\nv_mul_f32 v25, v30, v25")
    for c in RED8: A(f"s_nop 1\nv_add_f32_dpp v25, v25, v25 {c} {DPPF}")
    A("v_rcp_f32 v25, v25\nv_sub_f32 v24, v16, v24\nv_exp_f32 v24, v24\ns_nop 0\nv_mul_f32 v24, v24, v25")
    for w in range(4): A(f"v_mul_f32 v{28+2*w}, v{20+w}, v24\nv_mov_b32 v{29+2*w}, s63")
    A(f"ds_write_b128 v9, v[28:31] offset:{WF}\nds_write_b128 v9, v[32:35] offset:{WF+16}\ns_waitcnt lgkmcnt(0)")
    stamp(10)
    late_loads(True)
    A("s_barrier")
    A("L_tail:")
    stamp(7)
    if omerge:
        A("s_cmp_eq_u32 s35, 3\ns_cbranch_scc0 L_nom")
        for w in range(4): A(f"ds_read_b128 {vr(52+4*w)}, v75 offset:{OP+512*w}")
        A("s_waitcnt lgkmcnt(2)")
        for r in range(4): A(f"v_add_f32 v{52+r}, v{52+r}, v{56+r}")
        A("s_waitcnt lgkmcnt(0)")
        for r in range(4): A(f"v_add_f32 v{60+r}, v{60+r}, v{64+r}")
        for r in range(4): A(f"v_add_f32 v{52+r}, v{52+r}, v{60+r}")
        for r in range(4): tag(52+r, 27)
        A("s_mov_b32 exec_hi, 0")
        store2("s59", ["global_store_dwordx4 v6, v[52:55], s[26:27]"])
        exall()
        A("L_nom:")
    if ofirst: A(f"s_sleep {ofirst}")
    if NPO > 1: ppoll("L_op", NPO, [7, 6], 32, 112, ldl, ogap, 26)
    else:
        if "rtt" in diag: A("s_mov_b32 s95, 0")
        A("s_mov_b32 s42, 1\nL_oxc:")
        if "rtt" in diag: stamp(1); A("s_add_u32 s95, s95, 1")
        assert omerge
        load2("s59", ["global_load_dwordx4 v[32:35], v7, s[26:27]"])
        A("s_waitcnt vmcnt(0)\ns_cmp_eq_u32 s42, 0\ns_cbranch_scc1 L_nowd\ns_mov_b32 s42, 0")
        for rq in range(5): A(f"v_mfma_f32_16x16x32_bf16 v[44:47], {vr(HA+4*rq)}, {vr(WD+4*rq)}, {'0' if rq == 0 else 'v[44:47]'}")
        A("s_cmp_eq_u32 s35, 3\ns_cbranch_scc0 L_nowd")
        for rq in range(5): A(f"v_mfma_f32_16x16x32_bf16 v[48:51], {vr(HA+4*rq)}, {vr(WD+20+4*rq)}, {'0' if rq == 0 else 'v[48:51]'}")
        A("L_nowd:")
        if "rtt" in diag: stamp(2); A("s_waitcnt lgkmcnt(0)\ns_mov_b32 s70, s95\ns_mov_b32 s71, 0")
        check(list(range(32, 36 if omerge else 40)), 26)
        A("s_and_b64 exec, exec, vcc\ns_cbranch_execz L_oxd")
        if osleep: A(f"s_sleep {osleep}")
        loop("L_oxc")
        A("L_oxd:"); exall()
    stamp(8)
    if not omerge:
        for r in range(4): A(f"v_add_f32 v{32+r}, v{32+r}, v{36+r}")
    else: A("s_nop 0")
    for c in (RED8 if omerge else RED16):
        for r in range(4): A(f"v_add_f32_dpp v{32+r}, v{32+r}, v{32+r} {c} {DPPF}")
    for r in range(4): A(f"v_cvt_pk_bf16_f32 v{32+r}, v{32+r}, v{32+r}")
    for r in range(4): hands(32+r, AOP+4*r)
    A("s_nop 0")
    for rq in range(4): A(f"v_mfma_f32_16x16x32_bf16 v[44:47], {vr(AOP+4*rq)}, {vr(WO+4*rq)}, v[44:47]")
    A("s_cmp_eq_u32 s35, 3\ns_cbranch_scc0 L_y1")
    for rq in range(4): A(f"v_mfma_f32_16x16x32_bf16 v[48:51], {vr(AOP+4*rq)}, {vr(WO+16+4*rq)}, v[48:51]")
    A("L_y1:\ns_mov_b32 exec_hi, 0\ns_nop 4")
    for r in range(4): tag(44+r, 27)
    A(f"global_store_dwordx4 v5, v[44:47], s[26:27]{pst}\ns_cbranch_scc0 L_y3\ns_and_b32 exec_lo, s98, 0x00ff00ff")
    for r in range(4): tag(48+r, 27)
    A(f"global_store_dwordx4 v5, v[48:51], s[26:27] offset:512{pst}\nL_y3:"); exall()
    stamp(9)
    final()
    A("L_hC:")
    tail_setup(False)
    late_loads(False)
    A("s_barrier\ns_branch L_tail")

    A("L_s2:")
    masks()
    S = 60
    A("v_lshlrev_b32 v2, 4, v0")
    A("v_and_b32 v3, 3, v10\nv_lshl_add_u32 v3, v11, 2, v3\nv_lshlrev_b32 v3, 4, v3")
    A("s_mov_b32 s52, 0x000f000f\ns_mov_b32 s53, 0x000f000f\ns_mov_b32 s54, 0x00f000f0\ns_mov_b32 s55, 0x00f000f0")
    A("s_mov_b32 s56, 0x0f000f00\ns_mov_b32 s57, 0x0f000f00\ns_mov_b32 s58, 0xf000f000\ns_mov_b32 s59, 0xf000f000")
    A(f"s_mov_b32 s60, {SCALE:#x}\ns_mov_b32 s61, {LOG2E:#x}\nv_mov_b32 v52, 0xff800000")
    if omerge: A("s_lshl_b32 s40, s28, 9")
    else: A(f"s_lshl_b32 s40, s31, 2\ns_add_u32 s40, s40, s28\ns_lshl_b32 s40, s40, 9\ns_add_u32 s40, s40, {OX}")
    A(f"v_lshlrev_b32 v57, 5, v10\nv_lshl_add_u32 v57, v11, 4, v57\nv_add_u32 v57, s40, v57")
    A("s_lshl_b32 s41, s28, 4\nv_mov_b32 v58, s41\ns_lshl_b32 s41, s28, 3\nv_mov_b32 v9, s41\nv_mov_b32 v8, 0")
    while issued[0] < R0:
        A(f"s_waitcnt vmcnt({P-1})"); issue_unit()
    stamp(1)
    A("s_barrier")
    stamp(2)
    A(f"ds_read_b128 v[4:7], v3 offset:{QL}\nds_read_b32 v8, v8 offset:{WF+32}")
    A("s_waitcnt lgkmcnt(0)")
    for u in range(4):
        for w in range(4): A(f"v_cndmask_b32 v{16+4*u+w}, 0, v{4+w}, s[{52+2*u}:{53+2*u}]")
    A("v_mov_b32 v53, 0\nv_readfirstlane_b32 s42, v8")
    epoch_use()
    A("v_mov_b32 v59, s43")
    if fb is not None:
        assert RING >= 96
        A(f"v_mov_b32 v8, 0\ns_lshl_b32 s41, s28, 2\nv_mov_b32 v3, s41\ns_mov_b32 s41, {Linit}")
    def post(i):
        d = 32 + 4*(i & 1); t = S + i
        A(f"v_mov_b32_dpp v{t}, v{d} quad_perm:[0,0,0,0] {DPPF}\nv_mov_b32_dpp v55, v{d+2} quad_perm:[2,2,2,2] {DPPF}\ns_nop 0")
        A(f"v_add_f32_dpp v{t}, v{d+1}, v{t} quad_perm:[1,1,1,1] {DPPF}\nv_add_f32_dpp v55, v{d+3}, v55 quad_perm:[3,3,3,3] {DPPF}")
        A(f"v_add_f32 v{t}, v{t}, v55")
        if i & 1:
            a, b = t-1, t
            A(f"v_cvt_pk_bf16_f32 v56, v{a}, v{b}\nv_lshlrev_b32 v{a}, 16, v56\nv_and_b32 v{b}, 0xffff0000, v56")
            A(f"v_mul_f32 v{a}, s60, v{a}\nv_mul_f32 v{b}, s60, v{b}")
            A(f"v_cvt_pk_bf16_f32 v56, v{a}, v{b}\nv_lshlrev_b32 v{a}, 16, v56\nv_and_b32 v{b}, 0xffff0000, v56")
            A(f"v_max3_f32 v52, v52, v{a}, v{b}")
    since = [0]; extra = [0]
    def throttle():
        ph = issued[0] % 4; t = lab("t")
        for d in range(Dhi-1, Dlo-1, -1):
            A(f"s_cmp_ge_u32 s41, {4*(d+1)-ph}\ns_cbranch_scc1 {t}\ns_waitcnt vmcnt({d-1 + (1 if issued[0]-d < extra[0] else 0)})")
        A(f"{t}:")
    def fb_hooks():
        n = issued[0]
        pts = list(fb)
        if n == ktrig: A(f"v_mov_b32 v56, 100\nds_write_b32 v3, v56 offset:{PR+16}")
        if n in pts: A(f"v_mov_b32 v56, {pts.index(n)}\nds_write_b32 v3, v56 offset:{PR}")
        if n % 8 == 0: A(f"ds_read_b32 v11, v8 offset:{LV}")
        if n % 8 == 2: A("s_waitcnt lgkmcnt(0)\nv_readfirstlane_b32 s41, v11")
    def after_consume(k):
        since[0] += 1
        if fb is not None:
            if issued[0] < 256 and issued[0] - R <= k and (issued[0] - (k+1) < Dhi or since[0] >= cu):
                if issued[0] - (k+1) >= Dhi: A(f"s_waitcnt vmcnt({Dhi-1})")
                if issued[0] < kb: throttle()
                issue_unit(); since[0] = 0; fb_hooks()
            while Db and kb <= issued[0] < 256 and issued[0] - (k+1) < Db:
                issue_unit(); fb_hooks()
            return
        while issued[0] < 256 and issued[0] - R <= k:
            lag = issued[0] - (k+1)
            Dk = D if issued[0] < 128 else DV
            Dk = int(Dk*(k+1) + 1e-9) - int(Dk*k + 1e-9)
            if lag < Dk: issue_unit(); since[0] = 0
            elif since[0] >= cu:
                A(f"s_waitcnt vmcnt({Dk-1})"); issue_unit(); since[0] = 0; break
            else: break
    for k in range(128):
        i, a = divmod(k, 4); d = 32 + 4*(i & 1)
        A(f"s_waitcnt vmcnt({issued[0]-k-1})")
        c = "0" if a == 0 else vr(d)
        A(f"v_mfma_f32_16x16x32_bf16 {vr(d)}, {vr(RING+4*(k%R))}, {vr(16+4*a)}, {c}")
        after_consume(k)
        if a == 3 and i > 0: post(i-1)
    A("s_nop 7")
    post(31)
    stamp(3)
    R4 = ("row_ror:4 "+DPPF, "row_ror:8 "+DPPF, "row_bcast:15 row_mask:0xa bank_mask:0xf", "row_bcast:31 row_mask:0xc bank_mask:0xf")
    for c in R4: A(f"s_nop 1\nv_max_f32_dpp v52, v52, v52 {c}")
    A("s_nop 0\nv_readlane_b32 s62, v52, 63\ns_nop 1\nv_mov_b32 v54, s62\nv_mul_f32 v54, s61, v54")
    def expo(i):
        A(f"v_fma_f32 v{S+i}, v{S+i}, s61, -v54\nv_fma_f32 v{S+i+1}, v{S+i+1}, s61, -v54")
        A(f"v_exp_f32 v{S+i}, v{S+i}\nv_exp_f32 v{S+i+1}, v{S+i+1}\ns_nop 0")
        A(f"v_add_f32 v53, v53, v{S+i}\nv_cvt_pk_bf16_f32 v{S+i}, v{S+i}, v{S+i}")
        A(f"v_add_f32 v53, v53, v{S+i+1}\nv_cvt_pk_bf16_f32 v{S+i+1}, v{S+i+1}, v{S+i+1}")
    expo(0)
    A("s_nop 1")
    def ands(k):
        i, a = divmod(k, 4); o = 44 + 4*(k & 1)
        for w in range(4): A(f"v_and_b32_dpp v{o+w}, v{S+i}, v{12+w} row_newbcast:{4*a} {DPPF}")
    ands(0)
    for k in range(128):
        i, a = divmod(k, 4); n = 128 + k; o = 44 + 4*(k & 1)
        if k % 2 == 0 and 2 + k < 32: expo(2 + k)
        if k == kml:
            for c in R4: A(f"s_nop 1\nv_add_f32_dpp v53, v53, v53 {c}")
            A(f"v_mov_b32 v4, v54\nv_mov_b32 v5, s63\nv_mov_b32 v6, v53\nv_mov_b32 v7, s63\ns_mov_b32 exec_lo, 0\ns_mov_b32 exec_hi, 0x80000000")
            A(f"ds_write_b128 v58, v[4:7] offset:{ML4}\ns_mov_b64 exec, -1")
        if k == kwf: A(f"ds_read_b64 v[4:5], v9 offset:{WF}")
        if k == kpre:
            assert RING >= 96
            for r in range(4): A(f"v_not_b32 v{92+r}, v59")
            A("s_mov_b32 exec_hi, 0")
            store2("s42", ["global_store_dwordx4 v57, v[92:95], s[26:27]"])
            A("s_mov_b64 exec, -1")
            extra[0] = issued[0]
        if k + 1 < 128: ands(k+1)
        else: A("s_nop 1")
        A(f"s_waitcnt vmcnt({issued[0]-n-1 + (1 if n < extra[0] else 0)})")
        c = "0" if k == 0 else vr(40)
        A(f"v_mfma_f32_16x16x32_bf16 {vr(40)}, {vr(o)}, {vr(RING+4*(n%R))}, {c}")
        after_consume(n)
    A(f"L_wf:\ns_waitcnt lgkmcnt(0)\nv_cmp_ne_u32 vcc, s63, v5\ns_cbranch_vccz L_wfd\ns_sleep 1\nds_read_b64 v[4:5], v9 offset:{WF}")
    loop("L_wf")
    A("L_wfd:\ns_mov_b32 exec_hi, 0\ns_nop 3")
    for r in range(4): A(f"v_mul_f32 v{40+r}, v{40+r}, v4")
    if omerge:
        A(f"ds_write_b128 v57, v[40:43] offset:{OP}\ns_waitcnt lgkmcnt(0)")
    else:
        for r in range(4): tag(40+r, 59)
        store2("s42", ["global_store_dwordx4 v57, v[40:43], s[26:27]"])
    A("s_mov_b64 exec, -1")
    stamp(4)
    A("s_barrier")
    final_setup()
    A("s_branch L_final")
    A(f""".section .rodata,"a"
.p2align 6
.amdhsa_kernel {NAME}
  .amdhsa_next_free_vgpr 256
  .amdhsa_next_free_sgpr 100
  .amdhsa_accum_offset 256
  .amdhsa_group_segment_fixed_size 0
  .amdhsa_kernarg_size 96
  .amdhsa_user_sgpr_count 2
  .amdhsa_user_sgpr_kernarg_segment_ptr 1
  .amdhsa_system_sgpr_workgroup_id_x 1
.end_amdhsa_kernel""")
    return HEADER + "\n".join(L) + "\n"

if __name__ == "__main__":
    kw = eval("dict(" + (sys.argv[2] if len(sys.argv) > 2 else "") + ")")
    s = gen(**kw)
    open(sys.argv[1], "w").write(s)
    import hazard
    pr = hazard.check(s)
    print("\n".join(pr) if pr else "no hazards")
```

```python
import sys
NAME = "parallel_sum__mha_block_cached__glu_gated_bilinear__decode_kernel"
HEADER = open('parallel_sum__mha_block_cached__glu_gated_bilinear__decode.s.ref').read().split('; Override launch')[0]
QL, FIN, ML4, WF, PR, LV, HB, YB = 0, 256, 512, 576, 640, 672, 704, 1024
OP = YB + 5*1024
LDS_BYTES = OP + 2048
PA, GUG, OX, MLG, QX, EPOCH, STAMP = 0, 0x90000, 0xe0000, 0x160000, 0x170000, 0x190004, 0x300000
FBL, LVG = 0x1a0000, 0x1b0000
LOG2E, SCALE, EPS, INV576 = 0x3fb8aa3b, 0x3db504f3, 0x3727c5ac, 0x3ae38e39
DPPF = "row_mask:0xf bank_mask:0xf"
RED8 = ("quad_perm:[1,0,3,2]", "quad_perm:[2,3,0,1]", "row_half_mirror")
RED16 = ("row_ror:1", "row_ror:2", "row_ror:4", "row_ror:8")
WT = " sc0 sc1"
DOC = """
; ---------------------------------------------------------------------------------------------------------------
;
; ---------------------------------------------------------------------------------------------------------------"""

def gen(R=40, R0=40, P=6, D=5, DV=5.5, cu=2, hD=2, woD=2, kvfl="nt", wfl="nt", stamps=False, grot=7, psleep=0, gsleep=64, osleep=1,
        kml=40, kwf=112, fine=(), qwait=8, diag=(), barD=True, dry=False, local=True, ldl=" sc1", qlocal=True, qto=12, fb=tuple(range(48,240,16)), Dhi=7, Dlo=4, L0=20, G=6, Linit=21, lsleep=32, kpre=None, ofirst=3, pfirst=0, NPO=1, NPA=1, pgap=2, ogap=1, GX=0, X0=0, omerge=True, pld=WT, qld=WT, lfast=' nt', Lpar=0, LV2=0, srot=0, ktrig=256, gwait=1, tsleep=2, tdelay=0, tk=0, kb=999, Db=None, lD=0, gchk=' nt', qfast=' nt', hq=9, tlb=0, tlbv=0, pst=WT, ostore='', gxmask=0xfff, gxoff=0, kstep=1, alt=0, slotmap=0, lg=0, lgw=0, gsub=0, n1=None, wdfirst=False):
    L = []
    def A(s): L.extend(s.split("\n"))
    def fl(x): return (" " + x) if x else ""
    def stamp(i):
        if stamps: A(f"s_memrealtime s[{64+2*i}:{65+2*i}]")
    def vr(b, n=4): return f"v[{b}:{b+n-1}]"
    uid = [0]
    def lab(p):
        uid[0] += 1; return f"L_{p}{uid[0]}"
    def wave_reduce(op, v):
        for c in tuple(x+" "+DPPF for x in RED16) + ("row_bcast:15 row_mask:0xa bank_mask:0xf", "row_bcast:31 row_mask:0xc bank_mask:0xf"):
            A(f"s_nop 1\n{op}_dpp v{v}, v{v}, v{v} {c}")
    def masks():
        A("v_and_b32 v3, 1, v10\nv_lshlrev_b32 v3, 4, v3\nv_mov_b32 v4, 0xffff\nv_lshlrev_b32 v4, v3, v4\nv_bfe_u32 v3, v10, 1, 2")
        for w in range(4):
            A(f"v_cmp_eq_u32 vcc, {w}, v3\ns_nop 1\nv_cndmask_b32 v{12+w}, 0, v4, vcc")
    def epoch_load():
        A(f"s_add_u32 s48, s26, {EPOCH}\ns_addc_u32 s49, s27, 0\ns_load_dword s63, s[48:49], 0")
    def epoch_use():
        A(f"s_add_u32 s63, s63, 9\ns_and_b32 s43, s63, 0x3ff\ns_mov_b32 s51, 0xfffffc00\ns_and_b32 s96, s63, 0xff\ns_mov_b32 s97, 0xffffff00")
    def tag(r, vt, bits=10): A(f"v_and_or_b32 v{r}, v{r}, {'s51' if bits == 10 else 's97'}, v{vt}")
    def ortree(regs, t):
        A(f"v_or3_b32 v{t}, v{regs[0]}, v{regs[1]}, v{regs[2]}")
        rest = regs[3:]
        while len(rest) >= 2: A(f"v_or3_b32 v{t}, v{t}, v{rest[0]}, v{rest[1]}"); rest = rest[2:]
        if rest: A(f"v_or_b32 v{t}, v{t}, v{rest[0]}")
    def check(regs, t, bits=10):
        for r in regs: A(f"v_xor_b32 v{r}, {'s43' if bits == 10 else 's96'}, v{r}")
        ortree(regs, t)
        A(f"v_and_b32 v{t}, {(1 << bits) - 1:#x}, v{t}\nv_cmp_ne_u32 vcc, 0, v{t}")
    def loop(l): A(f"s_sub_u32 s94, s94, 1\ns_cbranch_scc0 {l}")
    def ppoll(lb, NP, addrs, canon, base, flv, gap, tmp):
        n = len(addrs)
        def iss(k):
            for a in range(n): A(f"global_load_dwordx4 {vr(base + 4*(n*k + a))}, v{addrs[a]}, s[26:27]{flv}")
        A("s_mov_b64 s[56:57], exec")
        for k in range(NP - 1):
            iss(k)
            if gap: A(f"s_sleep {gap}")
        A(f"{lb}:")
        for k in range(NP):
            iss((k + NP - 1) % NP)
            A(f"s_waitcnt vmcnt({n*(NP-1)})")
            b = base + 4*n*k
            check(list(range(b, b + 4*n)), tmp)
            A("s_andn2_b64 exec, exec, vcc")
            for r in range(4*n): A(f"v_mov_b32 v{canon+r}, v{b+r}")
            A(f"s_and_b64 s[56:57], s[56:57], vcc\ns_mov_b64 exec, s[56:57]\ns_cbranch_execz {lb}d")
            if gap: A(f"s_sleep {gap}")
        loop(lb)
        A(f"{lb}d:"); exall()
    def store2(flag, insns):
        if not local:
            for i in insns: A(i + WT)
            return
        a, b = lab("sw"), lab("sd")
        A(f"s_cmp_eq_u32 {flag}, 0\ns_cbranch_scc1 {a}")
        for i in insns: A(i)
        A(f"s_branch {b}\n{a}:")
        for i in insns: A(i + WT)
        A(f"{b}:")
    def load2(flag, insns, lfast=lfast):
        a, b = lab("lw"), lab("ld")
        A(f"s_cmp_eq_u32 {flag}, 0\ns_cbranch_scc1 {a}")
        for i in insns: A(i + lfast)
        A(f"s_branch {b}\n{a}:")
        for i in insns: A(i + " sc1")
        A(f"{b}:")
    def hands(src, o, bc=None):
        for w in range(4):
            if bc is None: A(f"v_and_b32 v{o+w}, v{src}, v{12+w}")
            else: A(f"v_and_b32_dpp v{o+w}, v{src}, v{12+w} row_newbcast:{bc} {DPPF}")
    def norm(r):
        A(f"v_lshlrev_b32 v{r}, 16, v{r}\nv_sub_f32 v{r}, v{r}, v45\nv_cvt_pk_bf16_f32 v{r}, v{r}, v{r}\nv_lshlrev_b32 v{r}, 16, v{r}\nv_mul_f32 v{r}, v{r}, v46\nv_cvt_pk_bf16_f32 v{r}, v{r}, v{r}")
    def layernorm():
        for k in range(8):
            A(f"v_lshlrev_b32 v{28+2*k}, 16, v{16+k}\nv_and_b32 v{29+2*k}, 0xffff0000, v{16+k}")
        for k in range(8): A(f"v_add_f32 v{48+k}, v{28+k}, v{36+k}")
        for st in (4, 2):
            for k in range(st): A(f"v_add_f32 v{48+k}, v{48+k}, v{48+k+st}")
        A("v_add_f32 v44, v48, v49")
        wave_reduce("v_add_f32", 44)
        A(f"s_nop 0\nv_readlane_b32 s40, v44, 63\ns_nop 1\nv_mov_b32 v45, s40\nv_mul_f32 v45, {INV576:#x}, v45")
        for k in range(16): A(f"v_sub_f32 v{48+k}, v{28+k}, v45")
        A("v_mul_f32 v44, v48, v48\nv_mul_f32 v47, v49, v49")
        for k in range(2, 8, 2): A(f"v_fmac_f32 v44, v{48+k}, v{48+k}\nv_fmac_f32 v47, v{49+k}, v{49+k}")
        A("s_mov_b64 exec, 0xff")
        for k in range(8, 16, 2): A(f"v_fmac_f32 v44, v{48+k}, v{48+k}\nv_fmac_f32 v47, v{49+k}, v{49+k}")
        A("s_mov_b64 exec, -1\nv_add_f32 v44, v44, v47")
        wave_reduce("v_add_f32", 44)
        A(f"s_nop 0\nv_readlane_b32 s40, v44, 63\ns_nop 1\nv_mov_b32 v46, s40\nv_mul_f32 v46, {INV576:#x}, v46")
        A(f"v_cvt_pk_bf16_f32 v46, v46, v46\nv_lshlrev_b32 v46, 16, v46\nv_add_f32 v46, {EPS:#x}, v46")
        A("v_cvt_pk_bf16_f32 v46, v46, v46\nv_lshlrev_b32 v46, 16, v46\nv_sqrt_f32 v46, v46\ns_nop 0")
        A("v_cvt_pk_bf16_f32 v46, v46, v46\nv_lshlrev_b32 v46, 16, v46\nv_rcp_f32 v46, v46")
        A("v_cvt_pk_bf16_f32 v45, v45, v45\nv_lshlrev_b32 v45, 16, v45")
    def xload():
        A("s_mul_i32 s40, s30, 144\nv_lshl_add_u32 v2, v11, 1, s40\nv_lshl_add_u32 v2, v10, 3, v2")
        A("s_mov_b32 s36, s4\ns_mov_b32 s37, s5\ns_mov_b32 s38, 1152\ns_mov_b32 s39, 0x20000")
        A("buffer_load_dwordx4 v[16:19], v1, s[36:39], 0 offen\nbuffer_load_dwordx4 v[20:23], v1, s[36:39], 0 offen offset:1024")
        A("buffer_load_ushort v24, v2, s[36:39], 0 offen\nbuffer_load_ushort v25, v2, s[36:39], 0 offen offset:128")
    def owntag(dst):
        A(f"s_getreg_b32 {dst}, hwreg(HW_REG_XCC_ID)\ns_and_b32 {dst}, {dst}, 7\ns_and_b32 s40, s63, 0xf8\ns_or_b32 {dst}, {dst}, s40")
    BIG = 112; AOP = 80
    def ex(lo, hi): A(f"s_and_b32 exec_lo, s98, {lo}\ns_and_b32 exec_hi, s98, {hi}")
    def exall(): A("s_mov_b64 exec, s[98:99]")
    OSRD = "s[84:87]" if not stamps else "s[52:55]"
    def final_setup():
        o = 84 if not stamps else 52
        A(f"v_and_b32 v73, 31, v0\ns_lshl_b32 s40, s28, 5\nv_add_u32 v73, s40, v73")
        A(f"v_lshrrev_b32 v74, 5, v0\nv_mul_u32_u24 v68, 2304, v73\nv_lshl_add_u32 v68, v74, 4, v68\ns_min_u32 s41, s2, 71\ns_lshl_b32 s40, s41, 5\nv_add_u32 v68, s40, v68")
        A(f"s_lshl_b32 s40, s41, 4\nv_lshl_add_u32 v69, v0, 1, s40\nv_lshlrev_b32 v70, 2, v0\ns_lshl_b32 s40, s28, 5\nv_lshl_add_u32 v71, v74, 4, s40")
        A(f"s_mov_b32 s36, s4\ns_mov_b32 s37, s5\ns_mov_b32 s38, 1152\ns_mov_b32 s39, 0x20000\ns_mov_b32 s{o}, s22\ns_mov_b32 s{o+1}, s23\ns_mov_b32 s{o+2}, 1152\ns_mov_b32 s{o+3}, 0x20000")
        A("buffer_load_ushort v72, v69, s[36:39], 0 offen\ns_mov_b32 s98, -1\ns_mov_b32 s99, -1")
    def final():
        A("; ---- final: 72 workgroups add the 256 partial rows for 8 columns each ----\nL_final:")
        A(f"s_cmp_ge_u32 s2, 72\ns_cbranch_scc1 L_fin0")
        if barD: A("s_cmp_eq_u32 s98, 0\ns_cbranch_scc1 L_pa\ns_barrier")
        A("L_pa:")
        if pfirst: A(f"s_sleep {pfirst}")
        if NPA > 1: ppoll("L_pp", NPA, [68], 76, 52, WT, pgap, 73)
        else:
            A(f"L_pa1:\nglobal_load_dwordx4 v[76:79], v68, s[26:27]{pld}\ns_waitcnt vmcnt(0)")
            check([76, 77, 78, 79], 73)
            A(f"s_and_b64 exec, exec, vcc\ns_cbranch_execz L_da")
            if psleep: A(f"s_sleep {psleep}")
            loop(f"L_pa1")
            A(f"L_da:"); exall()
        stamp(11)
        for c in tuple(x+" "+DPPF for x in RED16) + ("row_bcast:15 row_mask:0xa bank_mask:0xf",):
            for r in range(4): A(f"v_add_f32_dpp v{76+r}, v{76+r}, v{76+r} {c}")
        ex("0x80000000", "0x80000000")
        A(f"ds_write_b128 v71, v[76:79] offset:{FIN}\ns_waitcnt lgkmcnt(0)\ns_cmp_eq_u32 s98, 0\ns_cbranch_scc1 L_out\ns_barrier")
        stamp(12)
        A(f"s_cmp_lg_u32 s28, 0\ns_cbranch_scc1 L_ep")
        A("L_out:"); ex("0xff", "0")
        if NPA > 1: A("s_nop 0")
        for v in range(4): A(f"ds_read2_b32 v[{32+2*v}:{33+2*v}], v70 offset0:{FIN//4+16*v} offset1:{FIN//4+16*v+8}")
        A("v_lshlrev_b32 v72, 16, v72\ns_waitcnt lgkmcnt(0)")
        for st in (4, 2, 1):
            for k in range(st): A(f"v_add_f32 v{32+k}, v{32+k}, v{32+k+st}")
        A("v_add_f32 v32, v72, v32\nv_cvt_pk_bf16_f32 v32, v32, v32")
        A(f"buffer_store_short v32, v69, {OSRD}, 0 offen{ostore}")
        A("L_fin0:")
        if dry: A("s_cmp_eq_u32 s98, 0\ns_cbranch_scc1 L_real")
        A("s_branch L_fin\nL_ep:")
        A(f"s_cmp_lg_u32 s2, 0\ns_cbranch_scc1 L_fin\ns_cmp_lg_u32 s28, 4\ns_cbranch_scc1 L_fin")
        A(f"s_mov_b64 exec, 1\nv_mov_b32 v3, {EPOCH:#x}\nv_mov_b32 v4, s63\nglobal_store_dword v3, v4, s[26:27]{WT}")
        A(f"L_fin:")
        if stamps:
            A("s_waitcnt vmcnt(0)\ns_memrealtime s[90:91]\ns_getreg_b32 s92, hwreg(HW_REG_XCC_ID)\ns_mov_b32 s93, 0\ns_waitcnt lgkmcnt(0)")
            A(f"s_lshl_b32 s40, s2, 3\ns_add_u32 s40, s40, s28\ns_lshl_b32 s40, s40, 7\ns_add_u32 s40, s40, {STAMP}\ns_mov_b64 exec, 1\nv_mov_b32 v6, s40")
            for i in range(15):
                A(f"v_mov_b32 v8, s{64+2*i}\nv_mov_b32 v9, s{65+2*i}\nglobal_store_dwordx2 v6, v[8:9], s[26:27] offset:{8*i}")
        if "dbg" in diag:
            A("s_mov_b64 exec, 1\nv_mov_b32 v6, 0\ns_not_b32 s40, s64\nv_mov_b32 v8, s40\nglobal_atomic_umax v6, v8, s[24:25] sc1\nv_mov_b32 v8, s64\nglobal_atomic_umax v6, v8, s[24:25] offset:4 sc1\nv_mov_b32 v8, s90\nglobal_atomic_umax v6, v8, s[24:25] offset:8 sc1")
            A("s_cmp_lt_u32 s28, 4\ns_cbranch_scc0 L_end\nv_mov_b32 v8, s72\nglobal_atomic_umax v6, v8, s[24:25] offset:12 sc1\ns_not_b32 s40, s72\nv_mov_b32 v8, s40\nglobal_atomic_umax v6, v8, s[24:25] offset:16 sc1\nv_mov_b32 v8, s70\nglobal_atomic_umax v6, v8, s[24:25] offset:20 sc1\nv_mov_b32 v8, s68\nglobal_atomic_umax v6, v8, s[24:25] offset:24 sc1")
        A(f"L_end:\ns_endpgm")

    A(f"; @launch grid=(256,1,1) block=(512,1,1) lds={LDS_BYTES}")
    A(DOC.strip("\n"))
    A('.amdgcn_target "amdgcn-amd-amdhsa--gfx950"\n.text')
    A(f".globl {NAME}\n.p2align 8\n.type {NAME},@function\n{NAME}:")
    stamp(0)
    A("s_cmp_ge_u32 s2, 256\ns_cbranch_scc1 L_end")
    A("s_load_dwordx16 s[4:19], s[0:1], 0\ns_load_dwordx8 s[20:27], s[0:1], 64")
    A("v_lshrrev_b32 v1, 6, v0\nv_and_b32 v0, 63, v0")
    A("s_and_b32 s33, s2, 7\ns_lshr_b32 s34, s2, 3")
    A("v_readfirstlane_b32 s28, v1")
    A("s_lshl_b32 s31, s33, 5\ns_add_u32 s31, s31, s34\ns_lshr_b32 s29, s31, 3\ns_and_b32 s30, s31, 7")
    A("v_lshrrev_b32 v11, 4, v0\nv_and_b32 v10, 15, v0")
    A("s_mov_b32 s94, 0x40000\ns_cmp_lt_u32 s28, 4\ns_cbranch_scc0 L_hstart")
    RING = 256 - 4*R
    assert RING >= 92 and R % 4 == 0 and R0 <= R
    A("v_bfe_u32 v1, v0, 2, 2\nv_lshlrev_b32 v1, 8, v1\nv_lshl_add_u32 v1, v11, 6, v1\nv_and_b32 v3, 3, v0\nv_lshl_add_u32 v1, v3, 4, v1")
    A(f"s_lshl_b32 s40, s29, 22")
    if lg or lgw:
        A(f"s_mul_i32 s50, s29, {grot*(0x20000 << (lg+lgw)) + gsub}\ns_lshl_b32 s41, s30, {14+lg+lgw}\ns_add_u32 s50, s50, s41\ns_lshl_b32 s41, s28, {12+lgw}\ns_add_u32 s50, s50, s41\ns_and_b32 s50, s50, 0x3fffff")
    else: A(f"s_mul_i32 s50, s29, {grot*0x20000}\ns_lshl_b32 s41, s30, {(14,12,13)[slotmap]}\n" + ("" if slotmap < 2 else "s_and_b32 s95, s28, 1\ns_lshl_b32 s95, s95, 12\ns_add_u32 s41, s41, s95\n") + f"s_add_u32 s50, s50, s41\n" + (f"s_lshl_b32 s41, s28, {(12,15)[slotmap]}" if slotmap < 2 else "s_lshr_b32 s41, s28, 1\ns_lshl_b32 s41, s41, 16") + f"\ns_add_u32 s50, s50, s41\ns_and_b32 s50, s50, 0x3fffff")
    if alt: A(f"s_mov_b32 s95, {kstep*0x20000}\ns_bitcmp1_b32 s29, {alt-1}\ns_cselect_b32 s95, {(32-kstep)*0x20000}, s95")
    A("s_mov_b32 s38, 0x400000\ns_mov_b32 s39, 0x20000\ns_mov_b32 s46, 0x400000\ns_mov_b32 s47, 0x20000")
    A("s_waitcnt lgkmcnt(0)")
    A("s_add_u32 s36, s6, s40\ns_addc_u32 s37, s7, 0\ns_add_u32 s44, s8, s40\ns_addc_u32 s45, s9, 0")
    issued = [0]
    def issue_unit():
        n = issued[0]; a = n % 4
        A(f"buffer_load_dwordx4 {vr(RING + 4*(n % R))}, {'v1' if n < 128 else 'v2'}, {'s[36:39]' if n < 128 else 's[44:47]'}, s50 offen offset:{1024*a}{fl(kvfl)}")
        if a == 3:
            gi_ = (n // 4) % 32
            if lg or lgw:
                m = (1 << (lg+lgw)) - 1; sub = 0x4000 if lg else 0x1000
                inc = sub if (gi_ & m) != m else (0x20000 << (lg+lgw)) - m*sub
                A(f"s_add_u32 s50, s50, {inc}\ns_and_b32 s50, s50, 0x3fffff")
            elif srot: A(f"s_add_u32 s95, s50, {srot*0x1000}\ns_and_b32 s95, s95, 0x1ffff\ns_add_u32 s50, s50, 0x20000\ns_and_b32 s50, s50, 0x3e0000\ns_or_b32 s50, s50, s95")
            else: A(f"s_add_u32 s50, s50, {'s95' if alt else kstep*0x20000}\ns_and_b32 s50, s50, 0x3fffff")
        issued[0] += 1
        if issued[0] in fine: stamp(5 + list(fine).index(issued[0]))
    for n in range(min(P, R0)): issue_unit()
    epoch_load()
    A("s_branch L_s2")

    A("L_hstart:")
    A("s_sub_u32 s35, s28, 4\nv_lshlrev_b32 v1, 4, v0\nv_and_b32 v8, 7, v10")
    A("s_cmp_eq_u32 s35, 0\ns_cbranch_scc0 L_h123")
    A("s_mul_i32 s40, s30, 589824\ns_lshl_b32 s41, s29, 8\ns_add_u32 s40, s40, s41")
    A("v_lshlrev_b32 v7, 13, v11\nv_lshl_add_u32 v7, v10, 4, v7\nv_add_u32 v7, s40, v7")
    A(f"s_mov_b32 s46, {0 if 'nowq' in diag else 4718592}\ns_mov_b32 s47, 0x20000\ns_mov_b32 s42, 0")
    A("s_waitcnt lgkmcnt(0)")
    xload()
    A("s_mov_b32 s44, s10\ns_mov_b32 s45, s11")
    def wq_issue(u):
        A(f"buffer_load_dwordx4 {vr(BIG+4*u)}, v7, s[44:47], s42 offen{fl(wfl)}")
        if u < 17: A("s_add_u32 s42, s42, 0x8000")
    for u in range(hq): wq_issue(u)
    epoch_load()
    stamp(1)
    masks()
    A(f"v_lshlrev_b32 v5, 5, v10\nv_lshl_add_u32 v5, v11, 4, v5\ns_lshl_b32 s40, s31, 9\ns_add_u32 s40, s40, {QX}\nv_add_u32 v5, s40, v5")
    A(f"s_lshl_b32 s40, s29, 12\ns_add_u32 s40, s40, {QX}\nv_add_u32 v6, s40, v1")
    if fb is not None: A(f"v_mov_b32 v9, 0\nv_mov_b32 v3, -1\nds_write_b32 v9, v3 offset:{PR}\nds_write_b32 v9, v3 offset:{PR+16}\nv_mov_b32 v3, {Linit}\nds_write_b32 v9, v3 offset:{LV}")
    A(f"s_waitcnt vmcnt({hq+2})")
    layernorm()
    A(f"s_waitcnt vmcnt({hq}) lgkmcnt(0)")
    epoch_use()
    for t in range(2): norm(24+t)
    stamp(2)
    owntag("s58")
    A("v_mov_b32 v27, s58")
    hands(24, AOP, 0)
    for u in range(18):
        if u + 1 < 18: hands(24 + ((u+1) >> 4), AOP + 4*((u+1) & 1), (u+1) & 15)
        else: A("s_nop 1")
        A(f"s_waitcnt vmcnt({min(18, hq+u)-u-1})")
        c = "0" if u == 0 else vr(64)
        A(f"v_mfma_f32_16x16x32_bf16 {vr(64)}, {vr(AOP+4*(u&1))}, {vr(BIG+4*u)}, {c}")
        if hq + u < 18: wq_issue(hq + u)
    A("s_mov_b32 exec_hi, 0\ns_nop 6")
    for r in range(4): tag(64+r, 27, 8)
    A(f"global_store_dwordx4 v5, v[64:67], s[26:27]{'' if qlocal else WT}\ns_mov_b64 exec, -1\ns_mov_b32 s41, {qto}")
    stamp(3)
    if qwait: A(f"s_sleep {qwait}")
    A("L_qpoll:")
    if qlocal: load2("s41", [f"global_load_dwordx4 {vr(BIG+4*p)}, v6, s[26:27] offset:{1024*p}" for p in range(4)], qfast)
    else:
        for p in range(4): A(f"global_load_dwordx4 {vr(BIG+4*p)}, v6, s[26:27] offset:{1024*p}{qld}")
    A("s_waitcnt vmcnt(0)")
    for r in range(BIG, BIG+16): A(f"v_xor_b32 v{r}, s58, v{r}")
    ortree(list(range(BIG, BIG+16)), 3)
    A("v_and_b32 v4, 0xf8, v3\nv_cmp_ne_u32 vcc, 0, v4\ns_cbranch_vccz L_qdone")
    if qlocal:
        A("s_sleep 4\ns_cmp_eq_u32 s41, 0\ns_cbranch_scc1 L_qpoll3\ns_sub_u32 s41, s41, 1\ns_cmp_lg_u32 s41, 0\ns_cbranch_scc1 L_qpoll2\nbuffer_wbl2 sc1\ns_waitcnt vmcnt(0)")
        A("L_qpoll3:\nbuffer_inv sc1\ns_waitcnt vmcnt(0)\nL_qpoll2:")
    loop("L_qpoll")
    A("L_qdone:\nv_and_b32 v4, 7, v3\nv_cmp_ne_u32 vcc, 0, v4")
    for r in range(BIG, BIG+16): A(f"v_and_b32 v{r}, s97, v{r}")
    A("s_cmp_eq_u64 vcc, 0\ns_cselect_b32 s40, 1, 0")
    if qlocal: A("s_cbranch_scc1 L_qloc\nbuffer_wbl2 sc1\ns_waitcnt vmcnt(0)\nL_qloc:")
    for r in range(4): A(f"v_add_f32 v{BIG+r}, v{BIG+r}, v{BIG+4+r}\nv_add_f32 v{BIG+8+r}, v{BIG+8+r}, v{BIG+12+r}")
    for r in range(4): A(f"v_add_f32 v{BIG+r}, v{BIG+r}, v{BIG+8+r}")
    for r in range(4): A(f"v_mov_b32 v{BIG+4+r}, v{BIG+r}")
    A("v_and_b32 v4, 31, v0\nv_lshlrev_b32 v4, 3, v4")
    for r in range(4): A(f"v_permlane32_swap_b32 v{BIG+4+r}, v{BIG+r}")
    for r in range(4): A(f"v_add_f32 v{BIG+r}, v{BIG+4+r}, v{BIG+r}")
    A(f"v_cvt_pk_bf16_f32 v{BIG+8}, v{BIG}, v{BIG+1}\nv_cvt_pk_bf16_f32 v{BIG+9}, v{BIG+2}, v{BIG+3}\nds_write_b64 v4, v[{BIG+8}:{BIG+9}] offset:{QL}")
    A(f"v_mov_b32 v3, s40\nv_mov_b32 v4, 0\nds_write_b32 v4, v3 offset:{WF+32}\ns_waitcnt lgkmcnt(0)")
    stamp(4)
    A("s_barrier")
    if fb:
        A(f"v_mov_b32 v9, 0\ns_lshl_b32 s40, s33, 8\ns_add_u32 s40, s40, {FBL}\nv_lshl_add_u32 v5, v0, 2, s40\ns_add_u32 s46, s40, 128\nv_mov_b32 v7, s46\ns_lshl_b32 s42, s34, 2\ns_add_u32 s40, s40, s42\nv_mov_b32 v6, s40")
        A(f"s_lshl_b32 s40, s33, 7\ns_add_u32 s40, s40, {LVG}\nv_mov_b32 v26, s40\nv_lshlrev_b32 v2, 7, v0\nv_add_u32 v2, {LVG:#x}, v2")
        A(f"s_mov_b32 s41, 0\ns_lshl_b32 s44, s63, 5\ns_and_b32 s60, s58, 1\ns_mul_i32 s60, s60, {Lpar}")
        A(f"L_fb:\nds_read_b32 v3, v9 offset:{PR}\ns_waitcnt lgkmcnt(0)\nv_readfirstlane_b32 s40, v3\ns_cmp_ge_i32 s40, s41\ns_cbranch_scc1 L_fb2\ns_sleep 4")
        A("s_sub_u32 s94, s94, 1\ns_cbranch_scc0 L_fb\ns_branch L_hC")
        A(f"L_fb2:\ns_add_u32 s45, s44, s41\nv_mov_b32 v4, s45\ns_mov_b32 exec_hi, {1 if GX else 0}\nglobal_load_dword v3, v5, s[26:27] nt\ns_mov_b64 exec, 1\nglobal_store_dword v6, v4, s[26:27]")
        A(f"s_mov_b32 exec_lo, -1\ns_waitcnt vmcnt(1)")
        if GX: A(f"v_readlane_b32 s46, v3, 32\ns_sub_u32 s46, s46, s44\ns_cmp_lt_u32 s46, 32\ns_cselect_b32 s46, s46, {X0}")
        A(f"v_sub_u32 v3, v3, v4\nv_cmp_gt_u32 vcc, 32, v3\ns_bcnt1_i32_b64 s42, vcc\ns_mov_b64 exec, 1")
        A(f"s_mul_i32 s40, s42, {G}\ns_lshr_b32 s40, s40, 5\ns_add_u32 s40, s40, {L0}")
        if GX: A("s_add_u32 s40, s40, s46")
        if Lpar: A("s_add_u32 s40, s40, s60")
        if LV2:
            nv = sum(1 for q in fb if q < 152)
            A(f"s_cmp_ge_u32 s41, {nv}\ns_cselect_b32 s46, {LV2}, 0\ns_add_u32 s40, s40, s46")
        A(f"v_mov_b32 v3, s40\nds_write_b32 v9, v3 offset:{LV}")
        if GX:
            A(f"s_sub_u32 s42, s42, 15\ns_cmp_lt_u32 s42, 2\ns_cbranch_scc0 L_fb3\ns_mov_b32 s42, {gxmask}\ns_bitcmp1_b32 s42, s41\ns_cbranch_scc0 L_fb3")
            A(f"s_mov_b64 exec, 0xff\nglobal_load_dword v3, v2, s[26:27]{WT}\ns_mov_b64 exec, 1\nglobal_store_dword v26, v4, s[26:27]{WT}\ns_mov_b64 exec, 0xff\ns_waitcnt vmcnt(1)")
            A(f"v_sub_u32 v3, v3, v4\nv_cmp_gt_u32 vcc, 32, v3\ns_bcnt1_i32_b64 s42, vcc\ns_min_u32 s42, s42, 7\ns_max_u32 s42, s42, {gxoff}\ns_sub_u32 s42, s42, {gxoff}\ns_mul_i32 s42, s42, {GX}\ns_lshr_b32 s42, s42, 3\ns_add_u32 s42, s42, s44\ns_mov_b64 exec, 1\nv_mov_b32 v3, s42\nglobal_store_dword v7, v3, s[26:27]\nL_fb3:")
        A(f"s_mov_b64 exec, -1\ns_add_u32 s41, s41, 1\ns_cmp_lt_u32 s41, {len(fb)}\ns_cbranch_scc1 L_fb")
    A("s_branch L_hC")
    A("L_h123:")
    A("s_waitcnt lgkmcnt(0)")
    epoch_load()
    A("s_cmp_eq_u32 s35, 3\ns_cbranch_scc1 L_h3")
    A("s_and_b32 s56, s29, 3\ns_mov_b32 s57, 1\nv_mov_b32 v9, v10\ns_cmp_eq_u32 s35, 1\ns_cbranch_scc1 L_gu")
    A("s_cmp_eq_u32 s56, 0\ns_mov_b32 s56, 4\ns_mov_b32 s57, 0\nv_mov_b32 v9, v8\ns_cbranch_scc1 L_gu")
    masks()
    A("s_waitcnt lgkmcnt(0)"); epoch_use()
    A("s_barrier\ns_branch L_hC")
    A("L_gu:")
    xload()
    masks()
    A(f"s_waitcnt vmcnt(2)")
    layernorm()
    A(f"s_waitcnt vmcnt(0) lgkmcnt(0)")
    epoch_use()
    for t in range(2): norm(24+t)
    A("s_barrier")
    A("s_mul_i32 s40, s33, 1152\ns_lshl_b32 s41, s56, 8\ns_add_u32 s40, s40, s41")
    A("s_add_u32 s44, s16, s40\ns_addc_u32 s45, s17, 0\ns_sub_u32 s46, 5308416, s40\ns_mov_b32 s47, 0x20000")
    A("s_add_u32 s52, s18, s40\ns_addc_u32 s53, s19, 0\ns_mov_b32 s54, s46\ns_mov_b32 s55, 0x20000")
    if "nogu" in diag: A("s_mov_b32 s46, 0\ns_mov_b32 s54, 0")
    A("s_mul_i32 s40, s30, 663552\ns_mov_b32 s42, 9216\nv_mul_lo_u32 v6, v11, s42\nv_lshl_add_u32 v6, v9, 4, v6\nv_add_u32 v6, s40, v6")
    def gu_issue(k):
        u, mat = divmod(k, 2)
        if mat == 0: A(f"s_mov_b32 s42, {4*u*9216}")
        A(f"buffer_load_dwordx4 {vr(BIG+4*k)}, v6, {'s[52:55]' if mat else 's[44:47]'}, s42 offen{fl(wfl)}")
    gi = 0
    while gi < hD: gu_issue(gi); gi += 1
    A("v_mov_b32 v27, s96")
    hands(24, AOP, 0)
    for k in range(36):
        u, mat = divmod(k, 2)
        if mat == 0:
            if u + 1 < 18: hands(24 + ((u+1) >> 4), AOP + 4*((u+1) & 1), (u+1) & 15)
            else: A("s_nop 1")
        A(f"s_waitcnt vmcnt({gi-k-1})")
        d = 64 + 4*mat
        c = "0" if u == 0 else vr(d)
        A(f"v_mfma_f32_16x16x32_bf16 {vr(d)}, {vr(AOP+4*(u&1))}, {vr(BIG+4*k)}, {c}")
        if gi < 36: gu_issue(gi); gi += 1
    owntag("s58")
    A(f"s_lshl_b32 s40, s33, 14\ns_add_u32 s40, s40, {QX}\nv_and_b32 v3, 31, v0\nv_lshl_add_u32 v3, v3, 9, s40\nglobal_load_dwordx4 v[72:75], v3, s[26:27] offset:496{gchk if qlocal else qld}")
    A(f"s_mul_i32 s40, s33, 5\ns_add_u32 s40, s40, s56\ns_lshl_b32 s40, s40, 3\ns_add_u32 s40, s40, s30\ns_lshl_b32 s40, s40, 10\ns_add_u32 s40, s40, {GUG}\nv_lshlrev_b32 v5, 5, v10\nv_lshl_add_u32 v5, v11, 4, v5\nv_add_u32 v5, s40, v5")
    for r in range(8): tag(64+r, 27, 8)
    A("s_waitcnt vmcnt(0)")
    for r in range(72, 76): A(f"v_xor_b32 v{r}, s58, v{r}")
    ortree([72, 73, 74, 75], 4)
    A("v_and_b32 v4, 0xff, v4\nv_cmp_ne_u32 vcc, 0, v4\ns_cmp_eq_u64 vcc, 0\ns_cselect_b32 s59, 1, 0\ns_mov_b32 exec_hi, 0")
    store2("s59", ["global_store_dwordx4 v5, v[64:67], s[26:27]", "global_store_dwordx4 v5, v[68:71], s[26:27] offset:512"])
    A("s_mov_b64 exec, -1")
    stamp(4)
    A("s_cmp_eq_u32 s57, 0\ns_cbranch_scc1 L_hC")
    for _ in range(gwait): A("s_sleep 127")
    A(f"s_mul_i32 s40, s34, 18\nv_add_u32 v3, s40, v11\ns_mul_i32 s40, s33, 40960\ns_add_u32 s40, s40, {GUG}\nv_lshl_add_u32 v7, v8, 10, s40")
    for rq in range(5):
        A(f"v_add_u32 v4, {4*rq}, v3\nv_min_u32 v4, 575, v4\nv_lshrrev_b32 v5, 7, v4\nv_lshl_add_u32 v5, v5, 13, v7\nv_and_b32 v4, 127, v4\nv_lshl_add_u32 v{16+rq}, v4, 2, v5")
    A("L_gpoll:")
    G0 = 28
    load2("s59", [f"global_load_dword v{G0+2*rq+mat}, v{16+rq}, s[26:27] offset:{512*mat}" for rq in range(5) for mat in range(2)])
    A(f"s_waitcnt vmcnt(0)")
    check(list(range(G0, G0+10)), 3, 8)
    A(f"s_cbranch_vccz L_gdone\ns_sleep {gsleep}")
    loop("L_gpoll")
    A("L_gdone:")
    for c in RED8:
        for k in range(10): A(f"v_add_f32_dpp v{G0+k}, v{G0+k}, v{G0+k} {c} {DPPF}")
    for rq in range(5):
        b = G0+2*rq
        A(f"v_cvt_pk_bf16_f32 v{b}, v{b}, v{b+1}\nv_and_b32 v{b+1}, 0xffff0000, v{b}\nv_lshlrev_b32 v{b}, 16, v{b}\nv_mul_f32 v{b}, v{b}, v{b+1}\nv_cvt_pk_bf16_f32 v{b}, v{b}, v{b}")
    A(f"s_mov_b32 exec_lo, 0\nv_mov_b32 v{G0+8}, 0\ns_mov_b64 exec, -1")
    A(f"v_mul_u32_u24 v3, 40, v11\ns_mov_b32 exec_lo, 0x00010001\ns_mov_b32 exec_hi, 0x00010001")
    for rq in range(5): A(f"v_mov_b32 v{G0+2*rq+1}, s63\nds_write_b64 v3, v[{G0+2*rq}:{G0+2*rq+1}] offset:{HB+8*rq}")
    A("s_mov_b64 exec, -1\ns_waitcnt lgkmcnt(0)")
    stamp(5)
    A("s_branch L_hC")
    A("L_h3:")
    if tlb:
        A(f"s_lshl_b32 s40, s29, 22\ns_add_u32 s44, s6, s40\ns_addc_u32 s45, s7, 0\ns_add_u32 s52, s8, s40\ns_addc_u32 s53, s9, 0\ns_lshl_b32 s40, s29, 17")
        A("v_lshl_add_u32 v100, v0, 16, s40\nv_and_b32 v100, 0x3fffff, v100")
        if tlb == 2: A("s_cmp_eq_u32 s30, 0\ns_cbranch_scc0 L_notlb")
        A("global_load_dword v101, v100, s[44:45] nt")
        if tlbv == 1: A("global_load_dword v102, v100, s[52:53] nt")
        A("L_notlb:")
    masks()
    A("s_waitcnt lgkmcnt(0)"); epoch_use()
    A(f"v_mov_b32 v27, s43\ns_not_b32 s40, s63\nv_mov_b32 v3, s40\nv_lshlrev_b32 v4, 2, v10\nds_write_b32 v4, v3 offset:{ML4}\nv_lshlrev_b32 v4, 2, v8\nds_write_b32 v4, v3 offset:{WF}\nv_lshlrev_b32 v4, 2, v0\nds_write_b32 v4, v3 offset:{HB}\ns_waitcnt lgkmcnt(0)\ns_barrier")
    if tlb and tlbv == 2:
        A("s_sleep 127\ns_sleep 127\nglobal_load_dword v102, v100, s[52:53] nt")
    WO = 212
    WD = 112; HA = 192
    def late_loads(h3):
        t = lab("hb")
        A(f"v_mul_u32_u24 v3, 40, v11\n{t}:\ns_sleep 8\nds_read_b64 v[28:29], v3 offset:{HB}\nds_read_b64 v[30:31], v3 offset:{HB+8}\nds_read_b64 v[32:33], v3 offset:{HB+16}\nds_read_b64 v[34:35], v3 offset:{HB+24}\nds_read_b64 v[36:37], v3 offset:{HB+32}\ns_waitcnt lgkmcnt(0)")
        for q in range(5): A(f"v_xor_b32 v{29+2*q}, s63, v{29+2*q}")
        ortree([29, 31, 33, 35, 37], 4)
        A(f"v_cmp_ne_u32 vcc, 0, v4\ns_cbranch_vccz {t}d")
        loop(t)
        A(f"{t}d:")
        for q in range(5): hands(28+2*q, HA+4*q)
        A("s_mul_i32 s40, s31, 18432\ns_add_u32 s44, s12, s40\ns_addc_u32 s45, s13, 0\ns_mov_b32 s46, 18432\ns_mov_b32 s47, 0x20000")
        A("s_mul_i32 s40, s31, 20736\ns_add_u32 s88, s20, s40\ns_addc_u32 s89, s21, 0\ns_mov_b32 s90, 20736\ns_mov_b32 s91, 0x20000" if not stamps else
          "s_mul_i32 s40, s31, 20736\ns_add_u32 s36, s20, s40\ns_addc_u32 s37, s21, 0\ns_mov_b32 s38, 20736\ns_mov_b32 s39, 0x20000")
        if "nolate" in diag: A("s_mov_b32 s46, 0\ns_mov_b32 s90, 0")
        DS = "s[88:91]" if not stamps else "s[36:39]"
        A("s_lshl_b32 s40, s35, 8\nv_lshl_add_u32 v28, v10, 4, s40\nv_lshlrev_b32 v29, 4, v8\nv_add_u32 v29, 0x400, v29")
        A("v_mul_u32_u24 v4, 4608, v11\nv_add_u32 v30, v4, v28\nv_add_u32 v31, v4, v29\nv_mul_u32_u24 v4, 1152, v11\nv_add_u32 v28, v4, v28\nv_add_u32 v29, v4, v29")
        A("s_mov_b32 s48, 4608\ns_mov_b32 s49, 9216\ns_mov_b32 s50, 13824\ns_mov_b32 s62, 18432")
        t = lab("tr")
        A(f"{t}:\nds_read_b32 v3, v9 offset:{PR+16}\ns_waitcnt lgkmcnt(0)\nv_readfirstlane_b32 s40, v3\ns_cmp_eq_u32 s40, 100\ns_cbranch_scc1 {t}d\ns_sleep {tsleep}")
        loop(t)
        A(f"{t}d:")
        if tdelay: A(f"s_sleep {tdelay}")
        if tk:
            t2 = lab("tk")
            A(f"ds_read_b32 v3, v9 offset:{LV}\ns_waitcnt lgkmcnt(0)\nv_readfirstlane_b32 s40, v3\ns_sub_u32 s40, {L0+G-1}, s40\ns_min_u32 s40, s40, {G}\ns_mul_i32 s40, s40, {tk}")
            A(f"{t2}:\ns_cmp_eq_u32 s40, 0\ns_cbranch_scc1 {t2}d\ns_sleep 4\ns_sub_u32 s40, s40, 1\ns_branch {t2}\n{t2}d:")
        W_ = f"s_waitcnt vmcnt({lD-1})\n" if lD else ""
        lo = [f"buffer_load_dwordx4 {vr(WO+16*pb+4*rq)}, v{30+pb}, s[44:47], 0 offen offset:{rq*1152}{fl(wfl)}" for pb in range(2 if h3 else 1) for rq in range(4)]
        ld = [f"buffer_load_dwordx4 {vr(WD+20*pb+4*rq)}, v{28+pb}, {DS}, {('0','s48','s49','s50','s62')[rq]} offen{fl(wfl)}" for pb in range(2 if h3 else 1) for rq in range(5)]
        al = ld + lo if wdfirst else lo + ld
        k1 = len(al) if n1 is None else (2*n1 if h3 else n1)
        for x in al[:k1]: A(W_ + x)
        A("s_barrier")
        for x in al[k1:]: A(x)
        stamp(6)
    def tail_setup(h3):
        if omerge:
            A(f"s_lshl_b32 s40, s29, 12\ns_lshl_b32 s41, s30, 6\ns_add_u32 s40, s40, s41\ns_add_u32 s40, s40, {OX}\nv_lshlrev_b32 v7, 9, v8\nv_lshl_add_u32 v7, v11, 4, v7\nv_add_u32 v7, s40, v7")
            A(f"v_and_b32 v4, 1, v11\nv_lshlrev_b32 v4, 4, v4\nv_lshl_add_u32 v4, v10, 5, v4\ns_lshl_b32 s40, s31, 9\ns_add_u32 s40, s40, {OX}\nv_add_u32 v6, s40, v4\nv_mov_b32 v75, v4")
            A(f"v_mov_b32 v3, 0\nds_read_b32 v3, v3 offset:{WF+32}\ns_waitcnt lgkmcnt(0)\nv_readfirstlane_b32 s59, v3")
        else:
            A(f"s_lshl_b32 s40, s29, 14\ns_lshl_b32 s41, s30, 6\ns_add_u32 s40, s40, s41\ns_add_u32 s40, s40, {OX}\nv_lshlrev_b32 v7, 9, v10\nv_lshl_add_u32 v7, v11, 4, v7\nv_add_u32 v7, s40, v7\nv_add_u32 v6, 0x2000, v7")
        A(f"v_lshlrev_b32 v5, 5, v10\nv_lshl_add_u32 v5, v11, 4, v5\ns_mul_i32 s40, s31, 2304\ns_lshl_b32 s41, s35, 9\ns_add_u32 s40, s40, s41\nv_add_u32 v5, s40, v5\nv_mov_b32 v9, 0")
        A(f"v_mov_b32 v27, s43")
        final_setup()
        A("s_waitcnt vmcnt(0)")
    tail_setup(True)
    if dry: A("s_mov_b32 s98, 0\ns_mov_b32 s99, 0\ns_mov_b64 exec, 0\ns_branch L_tail\nL_real:\ns_mov_b32 s98, -1\ns_mov_b32 s99, -1\ns_mov_b64 exec, -1")
    A("L_m4:\ns_sleep 16")
    for w in range(4): A(f"ds_read_b128 {vr(28+4*w)}, v9 offset:{ML4+16*w}")
    A("s_waitcnt lgkmcnt(0)")
    for w in range(4): A(f"v_xor_b32 v{29+4*w}, s63, v{29+4*w}\nv_xor_b32 v{31+4*w}, s63, v{31+4*w}")
    ortree([29, 31, 33, 35, 37, 39, 41, 43], 3)
    A("v_cmp_ne_u32 vcc, 0, v3\ns_cbranch_vccz L_m4d")
    loop("L_m4")
    A("L_m4d:\nv_max3_f32 v16, v28, v32, v36\nv_max_f32 v16, v16, v40")
    for w in range(4): A(f"v_sub_f32 v{20+w}, v{28+4*w}, v16")
    for w in range(4): A(f"v_exp_f32 v{20+w}, v{20+w}")
    A("v_mov_b32 v17, s63\nv_mov_b32 v19, s63\nv_mul_f32 v18, v30, v20\nv_fmac_f32 v18, v34, v21\nv_fmac_f32 v18, v38, v22\nv_fmac_f32 v18, v42, v23")
    A(f"s_lshl_b32 s40, s31, 7\ns_add_u32 s40, s40, {MLG}\nv_add_u32 v3, s40, v1\ns_mov_b64 exec, 0xff")
    store2("s59", ["global_store_dwordx4 v3, v[16:19], s[26:27]"])
    A(f"s_mov_b64 exec, -1\ns_lshl_b32 s40, s29, 10\ns_add_u32 s40, s40, {MLG}\nv_lshl_add_u32 v4, v8, 7, s40")
    A(f"L_mlp:\ns_sleep 32")
    load2("s59", ["global_load_dwordx4 v[28:31], v4, s[26:27]"])
    A("s_waitcnt vmcnt(0)")
    A("v_xor_b32 v29, s63, v29\nv_xor_b32 v31, s63, v31\nv_or_b32 v3, v29, v31\nv_cmp_ne_u32 vcc, 0, v3\ns_cbranch_vccz L_mld")
    loop("L_mlp")
    A("L_mld:\nv_mov_b32 v24, v28")
    for c in RED8: A(f"s_nop 1\nv_max_f32_dpp v24, v24, v24 {c} {DPPF}")
    A("v_sub_f32 v25, v28, v24\nv_exp_f32 v25, v25\ns_nop 0\nv_mul_f32 v25, v30, v25")
    for c in RED8: A(f"s_nop 1\nv_add_f32_dpp v25, v25, v25 {c} {DPPF}")
    A("v_rcp_f32 v25, v25\nv_sub_f32 v24, v16, v24\nv_exp_f32 v24, v24\ns_nop 0\nv_mul_f32 v24, v24, v25")
    for w in range(4): A(f"v_mul_f32 v{28+2*w}, v{20+w}, v24\nv_mov_b32 v{29+2*w}, s63")
    A(f"ds_write_b128 v9, v[28:31] offset:{WF}\nds_write_b128 v9, v[32:35] offset:{WF+16}\ns_waitcnt lgkmcnt(0)")
    stamp(10)
    late_loads(True)
    A("L_tail:")
    stamp(7)
    if omerge:
        A("s_cmp_eq_u32 s35, 3\ns_cbranch_scc0 L_nom")
        for w in range(4): A(f"ds_read_b128 {vr(52+4*w)}, v75 offset:{OP+512*w}")
        A("s_waitcnt lgkmcnt(2)")
        for r in range(4): A(f"v_add_f32 v{52+r}, v{52+r}, v{56+r}")
        A("s_waitcnt lgkmcnt(0)")
        for r in range(4): A(f"v_add_f32 v{60+r}, v{60+r}, v{64+r}")
        for r in range(4): A(f"v_add_f32 v{52+r}, v{52+r}, v{60+r}")
        for r in range(4): tag(52+r, 27)
        A("s_mov_b32 exec_hi, 0")
        store2("s59", ["global_store_dwordx4 v6, v[52:55], s[26:27]"])
        exall()
        A("L_nom:")
    if ofirst: A(f"s_sleep {ofirst}")
    if NPO > 1: ppoll("L_op", NPO, [7, 6], 32, 112, ldl, ogap, 26)
    else:
        if "rtt" in diag: A("s_mov_b32 s95, 0")
        A("s_mov_b32 s42, 1\nL_oxc:")
        if "rtt" in diag: stamp(1); A("s_add_u32 s95, s95, 1")
        assert omerge
        load2("s59", ["global_load_dwordx4 v[32:35], v7, s[26:27]"])
        A("s_waitcnt vmcnt(0)\ns_cmp_eq_u32 s42, 0\ns_cbranch_scc1 L_nowd\ns_mov_b32 s42, 0")
        for rq in range(5): A(f"v_mfma_f32_16x16x32_bf16 v[44:47], {vr(HA+4*rq)}, {vr(WD+4*rq)}, {'0' if rq == 0 else 'v[44:47]'}")
        A("s_cmp_eq_u32 s35, 3\ns_cbranch_scc0 L_nowd")
        for rq in range(5): A(f"v_mfma_f32_16x16x32_bf16 v[48:51], {vr(HA+4*rq)}, {vr(WD+20+4*rq)}, {'0' if rq == 0 else 'v[48:51]'}")
        A("L_nowd:")
        if "rtt" in diag: stamp(2); A("s_waitcnt lgkmcnt(0)\ns_mov_b32 s70, s95\ns_mov_b32 s71, 0")
        check(list(range(32, 36 if omerge else 40)), 26)
        A("s_and_b64 exec, exec, vcc\ns_cbranch_execz L_oxd")
        if osleep: A(f"s_sleep {osleep}")
        loop("L_oxc")
        A("L_oxd:"); exall()
    stamp(8)
    if not omerge:
        for r in range(4): A(f"v_add_f32 v{32+r}, v{32+r}, v{36+r}")
    else: A("s_nop 0")
    for c in (RED8 if omerge else RED16):
        for r in range(4): A(f"v_add_f32_dpp v{32+r}, v{32+r}, v{32+r} {c} {DPPF}")
    for r in range(4): A(f"v_cvt_pk_bf16_f32 v{32+r}, v{32+r}, v{32+r}")
    for r in range(4): hands(32+r, AOP+4*r)
    A("s_nop 0")
    for rq in range(4): A(f"v_mfma_f32_16x16x32_bf16 v[44:47], {vr(AOP+4*rq)}, {vr(WO+4*rq)}, v[44:47]")
    A("s_cmp_eq_u32 s35, 3\ns_cbranch_scc0 L_y1")
    for rq in range(4): A(f"v_mfma_f32_16x16x32_bf16 v[48:51], {vr(AOP+4*rq)}, {vr(WO+16+4*rq)}, v[48:51]")
    A("L_y1:\ns_mov_b32 exec_hi, 0\ns_nop 4")
    for r in range(4): tag(44+r, 27)
    A(f"global_store_dwordx4 v5, v[44:47], s[26:27]{pst}\ns_cbranch_scc0 L_y3\ns_and_b32 exec_lo, s98, 0x00ff00ff")
    for r in range(4): tag(48+r, 27)
    A(f"global_store_dwordx4 v5, v[48:51], s[26:27] offset:512{pst}\nL_y3:"); exall()
    stamp(9)
    final()
    A("L_hC:")
    tail_setup(False)
    late_loads(False)
    A("s_branch L_tail")

    A("L_s2:")
    masks()
    S = 60
    A("v_lshlrev_b32 v2, 4, v0")
    A("v_and_b32 v3, 3, v10\nv_lshl_add_u32 v3, v11, 2, v3\nv_lshlrev_b32 v3, 4, v3")
    A("s_mov_b32 s52, 0x000f000f\ns_mov_b32 s53, 0x000f000f\ns_mov_b32 s54, 0x00f000f0\ns_mov_b32 s55, 0x00f000f0")
    A("s_mov_b32 s56, 0x0f000f00\ns_mov_b32 s57, 0x0f000f00\ns_mov_b32 s58, 0xf000f000\ns_mov_b32 s59, 0xf000f000")
    A(f"s_mov_b32 s60, {SCALE:#x}\ns_mov_b32 s61, {LOG2E:#x}\nv_mov_b32 v52, 0xff800000")
    if omerge: A("s_lshl_b32 s40, s28, 9")
    else: A(f"s_lshl_b32 s40, s31, 2\ns_add_u32 s40, s40, s28\ns_lshl_b32 s40, s40, 9\ns_add_u32 s40, s40, {OX}")
    A(f"v_lshlrev_b32 v57, 5, v10\nv_lshl_add_u32 v57, v11, 4, v57\nv_add_u32 v57, s40, v57")
    A("s_lshl_b32 s41, s28, 4\nv_mov_b32 v58, s41\ns_lshl_b32 s41, s28, 3\nv_mov_b32 v9, s41\nv_mov_b32 v8, 0")
    while issued[0] < R0:
        A(f"s_waitcnt vmcnt({P-1})"); issue_unit()
    stamp(1)
    A("s_barrier")
    stamp(2)
    A(f"ds_read_b128 v[4:7], v3 offset:{QL}\nds_read_b32 v8, v8 offset:{WF+32}")
    A("s_waitcnt lgkmcnt(0)")
    for u in range(4):
        for w in range(4): A(f"v_cndmask_b32 v{16+4*u+w}, 0, v{4+w}, s[{52+2*u}:{53+2*u}]")
    A("v_mov_b32 v53, 0\nv_readfirstlane_b32 s42, v8")
    epoch_use()
    A("v_mov_b32 v59, s43")
    if fb is not None:
        assert RING >= 96
        A(f"v_mov_b32 v8, 0\ns_lshl_b32 s41, s28, 2\nv_mov_b32 v3, s41\ns_mov_b32 s41, {Linit}")
    def post(i):
        d = 32 + 4*(i & 1); t = S + i
        A(f"v_mov_b32_dpp v{t}, v{d} quad_perm:[0,0,0,0] {DPPF}\nv_mov_b32_dpp v55, v{d+2} quad_perm:[2,2,2,2] {DPPF}\ns_nop 0")
        A(f"v_add_f32_dpp v{t}, v{d+1}, v{t} quad_perm:[1,1,1,1] {DPPF}\nv_add_f32_dpp v55, v{d+3}, v55 quad_perm:[3,3,3,3] {DPPF}")
        A(f"v_add_f32 v{t}, v{t}, v55")
        if i & 1:
            a, b = t-1, t
            A(f"v_cvt_pk_bf16_f32 v56, v{a}, v{b}\nv_lshlrev_b32 v{a}, 16, v56\nv_and_b32 v{b}, 0xffff0000, v56")
            A(f"v_mul_f32 v{a}, s60, v{a}\nv_mul_f32 v{b}, s60, v{b}")
            A(f"v_cvt_pk_bf16_f32 v56, v{a}, v{b}\nv_lshlrev_b32 v{a}, 16, v56\nv_and_b32 v{b}, 0xffff0000, v56")
            A(f"v_max3_f32 v52, v52, v{a}, v{b}")
    since = [0]; extra = [0]
    def throttle():
        ph = issued[0] % 4; t = lab("t")
        for d in range(Dhi-1, Dlo-1, -1):
            A(f"s_cmp_ge_u32 s41, {4*(d+1)-ph}\ns_cbranch_scc1 {t}\ns_waitcnt vmcnt({d-1 + (1 if issued[0]-d < extra[0] else 0)})")
        A(f"{t}:")
    def fb_hooks():
        n = issued[0]
        pts = list(fb)
        if n == ktrig: A(f"v_mov_b32 v56, 100\nds_write_b32 v3, v56 offset:{PR+16}")
        if n in pts: A(f"v_mov_b32 v56, {pts.index(n)}\nds_write_b32 v3, v56 offset:{PR}")
        if n % 8 == 0: A(f"ds_read_b32 v11, v8 offset:{LV}")
        if n % 8 == 2: A("s_waitcnt lgkmcnt(0)\nv_readfirstlane_b32 s41, v11")
    def after_consume(k):
        since[0] += 1
        if fb is not None:
            if issued[0] < 256 and issued[0] - R <= k and (issued[0] - (k+1) < Dhi or since[0] >= cu):
                if issued[0] - (k+1) >= Dhi: A(f"s_waitcnt vmcnt({Dhi-1})")
                if issued[0] < kb: throttle()
                issue_unit(); since[0] = 0; fb_hooks()
            while Db and kb <= issued[0] < 256 and issued[0] - (k+1) < Db:
                issue_unit(); fb_hooks()
            return
        while issued[0] < 256 and issued[0] - R <= k:
            lag = issued[0] - (k+1)
            Dk = D if issued[0] < 128 else DV
            Dk = int(Dk*(k+1) + 1e-9) - int(Dk*k + 1e-9)
            if lag < Dk: issue_unit(); since[0] = 0
            elif since[0] >= cu:
                A(f"s_waitcnt vmcnt({Dk-1})"); issue_unit(); since[0] = 0; break
            else: break
    for k in range(128):
        i, a = divmod(k, 4); d = 32 + 4*(i & 1)
        A(f"s_waitcnt vmcnt({issued[0]-k-1})")
        c = "0" if a == 0 else vr(d)
        A(f"v_mfma_f32_16x16x32_bf16 {vr(d)}, {vr(RING+4*(k%R))}, {vr(16+4*a)}, {c}")
        after_consume(k)
        if a == 3 and i > 0: post(i-1)
    A("s_nop 7")
    post(31)
    stamp(3)
    R4 = ("row_ror:4 "+DPPF, "row_ror:8 "+DPPF, "row_bcast:15 row_mask:0xa bank_mask:0xf", "row_bcast:31 row_mask:0xc bank_mask:0xf")
    for c in R4: A(f"s_nop 1\nv_max_f32_dpp v52, v52, v52 {c}")
    A("s_nop 0\nv_readlane_b32 s62, v52, 63\ns_nop 1\nv_mov_b32 v54, s62\nv_mul_f32 v54, s61, v54")
    def expo(i):
        A(f"v_fma_f32 v{S+i}, v{S+i}, s61, -v54\nv_fma_f32 v{S+i+1}, v{S+i+1}, s61, -v54")
        A(f"v_exp_f32 v{S+i}, v{S+i}\nv_exp_f32 v{S+i+1}, v{S+i+1}\ns_nop 0")
        A(f"v_add_f32 v53, v53, v{S+i}\nv_cvt_pk_bf16_f32 v{S+i}, v{S+i}, v{S+i}")
        A(f"v_add_f32 v53, v53, v{S+i+1}\nv_cvt_pk_bf16_f32 v{S+i+1}, v{S+i+1}, v{S+i+1}")
    expo(0)
    A("s_nop 1")
    def ands(k):
        i, a = divmod(k, 4); o = 44 + 4*(k & 1)
        for w in range(4): A(f"v_and_b32_dpp v{o+w}, v{S+i}, v{12+w} row_newbcast:{4*a} {DPPF}")
    ands(0)
    for k in range(128):
        i, a = divmod(k, 4); n = 128 + k; o = 44 + 4*(k & 1)
        if k % 2 == 0 and 2 + k < 32: expo(2 + k)
        if k == kml:
            for c in R4: A(f"s_nop 1\nv_add_f32_dpp v53, v53, v53 {c}")
            A(f"v_mov_b32 v4, v54\nv_mov_b32 v5, s63\nv_mov_b32 v6, v53\nv_mov_b32 v7, s63\ns_mov_b32 exec_lo, 0\ns_mov_b32 exec_hi, 0x80000000")
            A(f"ds_write_b128 v58, v[4:7] offset:{ML4}\ns_mov_b64 exec, -1")
        if k == kwf: A(f"ds_read_b64 v[4:5], v9 offset:{WF}")
        if k == kpre:
            assert RING >= 96
            for r in range(4): A(f"v_not_b32 v{92+r}, v59")
            A("s_mov_b32 exec_hi, 0")
            store2("s42", ["global_store_dwordx4 v57, v[92:95], s[26:27]"])
            A("s_mov_b64 exec, -1")
            extra[0] = issued[0]
        if k + 1 < 128: ands(k+1)
        else: A("s_nop 1")
        A(f"s_waitcnt vmcnt({issued[0]-n-1 + (1 if n < extra[0] else 0)})")
        c = "0" if k == 0 else vr(40)
        A(f"v_mfma_f32_16x16x32_bf16 {vr(40)}, {vr(o)}, {vr(RING+4*(n%R))}, {c}")
        after_consume(n)
    A(f"L_wf:\ns_waitcnt lgkmcnt(0)\nv_cmp_ne_u32 vcc, s63, v5\ns_cbranch_vccz L_wfd\ns_sleep 1\nds_read_b64 v[4:5], v9 offset:{WF}")
    loop("L_wf")
    A("L_wfd:\ns_mov_b32 exec_hi, 0\ns_nop 3")
    for r in range(4): A(f"v_mul_f32 v{40+r}, v{40+r}, v4")
    if omerge:
        A(f"ds_write_b128 v57, v[40:43] offset:{OP}\ns_waitcnt lgkmcnt(0)")
    else:
        for r in range(4): tag(40+r, 59)
        store2("s42", ["global_store_dwordx4 v57, v[40:43], s[26:27]"])
    A("s_mov_b64 exec, -1")
    stamp(4)
    A("s_barrier")
    final_setup()
    A("s_branch L_final")
    A(f""".section .rodata,"a"
.p2align 6
.amdhsa_kernel {NAME}
  .amdhsa_next_free_vgpr 256
  .amdhsa_next_free_sgpr 100
  .amdhsa_accum_offset 256
  .amdhsa_group_segment_fixed_size 0
  .amdhsa_kernarg_size 96
  .amdhsa_user_sgpr_count 2
  .amdhsa_user_sgpr_kernarg_segment_ptr 1
  .amdhsa_system_sgpr_workgroup_id_x 1
.end_amdhsa_kernel""")
    return HEADER + "\n".join(L) + "\n"

if __name__ == "__main__":
    kw = eval("dict(" + (sys.argv[2] if len(sys.argv) > 2 else "") + ")")
    s = gen(**kw)
    open(sys.argv[1], "w").write(s)
    import hazard
    pr = hazard.check(s)
    print("\n".join(pr) if pr else "no hazards")
```

```python
import sys
NAME = "parallel_sum__mha_block_cached__glu_gated_bilinear__decode_kernel"
HEADER = open('parallel_sum__mha_block_cached__glu_gated_bilinear__decode.s.ref').read().split('; Override launch')[0]
QL, FIN, ML4, WF, PR, LV, HB, YB = 0, 256, 512, 576, 640, 672, 704, 1024
OP = YB + 5*1024
LDS_BYTES = OP + 2048
PA, GUG, OX, MLG, QX, EPOCH, STAMP = 0, 0x90000, 0xe0000, 0x160000, 0x170000, 0x190004, 0x300000
FBL, LVG = 0x1a0000, 0x1b0000
LOG2E, SCALE, EPS, INV576 = 0x3fb8aa3b, 0x3db504f3, 0x3727c5ac, 0x3ae38e39
DPPF = "row_mask:0xf bank_mask:0xf"
RED8 = ("quad_perm:[1,0,3,2]", "quad_perm:[2,3,0,1]", "row_half_mirror")
RED16 = ("row_ror:1", "row_ror:2", "row_ror:4", "row_ror:8")
WT = " sc0 sc1"
DOC = """
; ---------------------------------------------------------------------------------------------------------------
;
; ---------------------------------------------------------------------------------------------------------------"""

def gen(R=40, R0=40, P=6, D=5, DV=5.5, cu=2, hD=2, woD=2, kvfl="nt", wfl="nt", stamps=False, grot=7, psleep=0, gsleep=64, osleep=1,
        kml=40, kwf=112, fine=(), qwait=8, diag=(), barD=True, dry=False, local=True, ldl=" sc1", qlocal=True, qto=12, fb=tuple(range(48,240,16)), Dhi=7, Dlo=4, L0=20, G=6, Linit=21, lsleep=32, kpre=None, ofirst=3, pfirst=0, NPO=1, NPA=1, pgap=2, ogap=1, GX=0, X0=0, omerge=True, pld=WT, qld=WT, lfast=' nt', Lpar=0, LV2=0, srot=0, ktrig=256, gwait=1, tsleep=2, tdelay=0, tk=0, kb=999, Db=None, lD=0, gchk=' nt', qfast=' nt', hq=9, tlb=0, tlbv=0, pst=WT, ostore='', gxmask=0xfff, gxoff=0, kstep=1, alt=0, slotmap=0, lg=0, lgw=0, gsub=0, n1=None, wdfirst=False, vfl=None, vsplit=0, Lx=0):
    L = []
    def A(s): L.extend(s.split("\n"))
    def fl(x): return (" " + x) if x else ""
    def stamp(i):
        if stamps: A(f"s_memrealtime s[{64+2*i}:{65+2*i}]")
    def vr(b, n=4): return f"v[{b}:{b+n-1}]"
    uid = [0]
    def lab(p):
        uid[0] += 1; return f"L_{p}{uid[0]}"
    def wave_reduce(op, v):
        for c in tuple(x+" "+DPPF for x in RED16) + ("row_bcast:15 row_mask:0xa bank_mask:0xf", "row_bcast:31 row_mask:0xc bank_mask:0xf"):
            A(f"s_nop 1\n{op}_dpp v{v}, v{v}, v{v} {c}")
    def masks():
        A("v_and_b32 v3, 1, v10\nv_lshlrev_b32 v3, 4, v3\nv_mov_b32 v4, 0xffff\nv_lshlrev_b32 v4, v3, v4\nv_bfe_u32 v3, v10, 1, 2")
        for w in range(4):
            A(f"v_cmp_eq_u32 vcc, {w}, v3\ns_nop 1\nv_cndmask_b32 v{12+w}, 0, v4, vcc")
    def epoch_load():
        A(f"s_add_u32 s48, s26, {EPOCH}\ns_addc_u32 s49, s27, 0\ns_load_dword s63, s[48:49], 0")
    def epoch_use():
        A(f"s_add_u32 s63, s63, 9\ns_and_b32 s43, s63, 0x3ff\ns_mov_b32 s51, 0xfffffc00\ns_and_b32 s96, s63, 0xff\ns_mov_b32 s97, 0xffffff00")
    def tag(r, vt, bits=10): A(f"v_and_or_b32 v{r}, v{r}, {'s51' if bits == 10 else 's97'}, v{vt}")
    def ortree(regs, t):
        A(f"v_or3_b32 v{t}, v{regs[0]}, v{regs[1]}, v{regs[2]}")
        rest = regs[3:]
        while len(rest) >= 2: A(f"v_or3_b32 v{t}, v{t}, v{rest[0]}, v{rest[1]}"); rest = rest[2:]
        if rest: A(f"v_or_b32 v{t}, v{t}, v{rest[0]}")
    def check(regs, t, bits=10):
        for r in regs: A(f"v_xor_b32 v{r}, {'s43' if bits == 10 else 's96'}, v{r}")
        ortree(regs, t)
        A(f"v_and_b32 v{t}, {(1 << bits) - 1:#x}, v{t}\nv_cmp_ne_u32 vcc, 0, v{t}")
    def loop(l): A(f"s_sub_u32 s94, s94, 1\ns_cbranch_scc0 {l}")
    def ppoll(lb, NP, addrs, canon, base, flv, gap, tmp):
        n = len(addrs)
        def iss(k):
            for a in range(n): A(f"global_load_dwordx4 {vr(base + 4*(n*k + a))}, v{addrs[a]}, s[26:27]{flv}")
        A("s_mov_b64 s[56:57], exec")
        for k in range(NP - 1):
            iss(k)
            if gap: A(f"s_sleep {gap}")
        A(f"{lb}:")
        for k in range(NP):
            iss((k + NP - 1) % NP)
            A(f"s_waitcnt vmcnt({n*(NP-1)})")
            b = base + 4*n*k
            check(list(range(b, b + 4*n)), tmp)
            A("s_andn2_b64 exec, exec, vcc")
            for r in range(4*n): A(f"v_mov_b32 v{canon+r}, v{b+r}")
            A(f"s_and_b64 s[56:57], s[56:57], vcc\ns_mov_b64 exec, s[56:57]\ns_cbranch_execz {lb}d")
            if gap: A(f"s_sleep {gap}")
        loop(lb)
        A(f"{lb}d:"); exall()
    def store2(flag, insns):
        if not local:
            for i in insns: A(i + WT)
            return
        a, b = lab("sw"), lab("sd")
        A(f"s_cmp_eq_u32 {flag}, 0\ns_cbranch_scc1 {a}")
        for i in insns: A(i)
        A(f"s_branch {b}\n{a}:")
        for i in insns: A(i + WT)
        A(f"{b}:")
    def load2(flag, insns, lfast=lfast):
        a, b = lab("lw"), lab("ld")
        A(f"s_cmp_eq_u32 {flag}, 0\ns_cbranch_scc1 {a}")
        for i in insns: A(i + lfast)
        A(f"s_branch {b}\n{a}:")
        for i in insns: A(i + " sc1")
        A(f"{b}:")
    def hands(src, o, bc=None):
        for w in range(4):
            if bc is None: A(f"v_and_b32 v{o+w}, v{src}, v{12+w}")
            else: A(f"v_and_b32_dpp v{o+w}, v{src}, v{12+w} row_newbcast:{bc} {DPPF}")
    def norm(r):
        A(f"v_lshlrev_b32 v{r}, 16, v{r}\nv_sub_f32 v{r}, v{r}, v45\nv_cvt_pk_bf16_f32 v{r}, v{r}, v{r}\nv_lshlrev_b32 v{r}, 16, v{r}\nv_mul_f32 v{r}, v{r}, v46\nv_cvt_pk_bf16_f32 v{r}, v{r}, v{r}")
    def layernorm():
        for k in range(8):
            A(f"v_lshlrev_b32 v{28+2*k}, 16, v{16+k}\nv_and_b32 v{29+2*k}, 0xffff0000, v{16+k}")
        for k in range(8): A(f"v_add_f32 v{48+k}, v{28+k}, v{36+k}")
        for st in (4, 2):
            for k in range(st): A(f"v_add_f32 v{48+k}, v{48+k}, v{48+k+st}")
        A("v_add_f32 v44, v48, v49")
        wave_reduce("v_add_f32", 44)
        A(f"s_nop 0\nv_readlane_b32 s40, v44, 63\ns_nop 1\nv_mov_b32 v45, s40\nv_mul_f32 v45, {INV576:#x}, v45")
        for k in range(16): A(f"v_sub_f32 v{48+k}, v{28+k}, v45")
        A("v_mul_f32 v44, v48, v48\nv_mul_f32 v47, v49, v49")
        for k in range(2, 8, 2): A(f"v_fmac_f32 v44, v{48+k}, v{48+k}\nv_fmac_f32 v47, v{49+k}, v{49+k}")
        A("s_mov_b64 exec, 0xff")
        for k in range(8, 16, 2): A(f"v_fmac_f32 v44, v{48+k}, v{48+k}\nv_fmac_f32 v47, v{49+k}, v{49+k}")
        A("s_mov_b64 exec, -1\nv_add_f32 v44, v44, v47")
        wave_reduce("v_add_f32", 44)
        A(f"s_nop 0\nv_readlane_b32 s40, v44, 63\ns_nop 1\nv_mov_b32 v46, s40\nv_mul_f32 v46, {INV576:#x}, v46")
        A(f"v_cvt_pk_bf16_f32 v46, v46, v46\nv_lshlrev_b32 v46, 16, v46\nv_add_f32 v46, {EPS:#x}, v46")
        A("v_cvt_pk_bf16_f32 v46, v46, v46\nv_lshlrev_b32 v46, 16, v46\nv_sqrt_f32 v46, v46\ns_nop 0")
        A("v_cvt_pk_bf16_f32 v46, v46, v46\nv_lshlrev_b32 v46, 16, v46\nv_rcp_f32 v46, v46")
        A("v_cvt_pk_bf16_f32 v45, v45, v45\nv_lshlrev_b32 v45, 16, v45")
    def xload():
        A("s_mul_i32 s40, s30, 144\nv_lshl_add_u32 v2, v11, 1, s40\nv_lshl_add_u32 v2, v10, 3, v2")
        A("s_mov_b32 s36, s4\ns_mov_b32 s37, s5\ns_mov_b32 s38, 1152\ns_mov_b32 s39, 0x20000")
        A("buffer_load_dwordx4 v[16:19], v1, s[36:39], 0 offen\nbuffer_load_dwordx4 v[20:23], v1, s[36:39], 0 offen offset:1024")
        A("buffer_load_ushort v24, v2, s[36:39], 0 offen\nbuffer_load_ushort v25, v2, s[36:39], 0 offen offset:128")
    def owntag(dst):
        A(f"s_getreg_b32 {dst}, hwreg(HW_REG_XCC_ID)\ns_and_b32 {dst}, {dst}, 7\ns_and_b32 s40, s63, 0xf8\ns_or_b32 {dst}, {dst}, s40")
    BIG = 112; AOP = 80
    def ex(lo, hi): A(f"s_and_b32 exec_lo, s98, {lo}\ns_and_b32 exec_hi, s98, {hi}")
    def exall(): A("s_mov_b64 exec, s[98:99]")
    OSRD = "s[84:87]" if not stamps else "s[52:55]"
    def final_setup():
        o = 84 if not stamps else 52
        A(f"v_and_b32 v73, 31, v0\ns_lshl_b32 s40, s28, 5\nv_add_u32 v73, s40, v73")
        A(f"v_lshrrev_b32 v74, 5, v0\nv_mul_u32_u24 v68, 2304, v73\nv_lshl_add_u32 v68, v74, 4, v68\ns_min_u32 s41, s2, 71\ns_lshl_b32 s40, s41, 5\nv_add_u32 v68, s40, v68")
        A(f"s_lshl_b32 s40, s41, 4\nv_lshl_add_u32 v69, v0, 1, s40\nv_lshlrev_b32 v70, 2, v0\ns_lshl_b32 s40, s28, 5\nv_lshl_add_u32 v71, v74, 4, s40")
        A(f"s_mov_b32 s36, s4\ns_mov_b32 s37, s5\ns_mov_b32 s38, 1152\ns_mov_b32 s39, 0x20000\ns_mov_b32 s{o}, s22\ns_mov_b32 s{o+1}, s23\ns_mov_b32 s{o+2}, 1152\ns_mov_b32 s{o+3}, 0x20000")
        A("buffer_load_ushort v72, v69, s[36:39], 0 offen\ns_mov_b32 s98, -1\ns_mov_b32 s99, -1")
    def final():
        A("; ---- final: 72 workgroups add the 256 partial rows for 8 columns each ----\nL_final:")
        A(f"s_cmp_ge_u32 s2, 72\ns_cbranch_scc1 L_fin0")
        if barD: A("s_cmp_eq_u32 s98, 0\ns_cbranch_scc1 L_pa\ns_barrier")
        A("L_pa:")
        if pfirst: A(f"s_sleep {pfirst}")
        if NPA > 1: ppoll("L_pp", NPA, [68], 76, 52, WT, pgap, 73)
        else:
            A(f"L_pa1:\nglobal_load_dwordx4 v[76:79], v68, s[26:27]{pld}\ns_waitcnt vmcnt(0)")
            check([76, 77, 78, 79], 73)
            A(f"s_and_b64 exec, exec, vcc\ns_cbranch_execz L_da")
            if psleep: A(f"s_sleep {psleep}")
            loop(f"L_pa1")
            A(f"L_da:"); exall()
        stamp(11)
        for c in tuple(x+" "+DPPF for x in RED16) + ("row_bcast:15 row_mask:0xa bank_mask:0xf",):
            for r in range(4): A(f"v_add_f32_dpp v{76+r}, v{76+r}, v{76+r} {c}")
        ex("0x80000000", "0x80000000")
        A(f"ds_write_b128 v71, v[76:79] offset:{FIN}\ns_waitcnt lgkmcnt(0)\ns_cmp_eq_u32 s98, 0\ns_cbranch_scc1 L_out\ns_barrier")
        stamp(12)
        A(f"s_cmp_lg_u32 s28, 0\ns_cbranch_scc1 L_ep")
        A("L_out:"); ex("0xff", "0")
        if NPA > 1: A("s_nop 0")
        for v in range(4): A(f"ds_read2_b32 v[{32+2*v}:{33+2*v}], v70 offset0:{FIN//4+16*v} offset1:{FIN//4+16*v+8}")
        A("v_lshlrev_b32 v72, 16, v72\ns_waitcnt lgkmcnt(0)")
        for st in (4, 2, 1):
            for k in range(st): A(f"v_add_f32 v{32+k}, v{32+k}, v{32+k+st}")
        A("v_add_f32 v32, v72, v32\nv_cvt_pk_bf16_f32 v32, v32, v32")
        A(f"buffer_store_short v32, v69, {OSRD}, 0 offen{ostore}")
        A("L_fin0:")
        if dry: A("s_cmp_eq_u32 s98, 0\ns_cbranch_scc1 L_real")
        A("s_branch L_fin\nL_ep:")
        A(f"s_cmp_lg_u32 s2, 0\ns_cbranch_scc1 L_fin\ns_cmp_lg_u32 s28, 4\ns_cbranch_scc1 L_fin")
        A(f"s_mov_b64 exec, 1\nv_mov_b32 v3, {EPOCH:#x}\nv_mov_b32 v4, s63\nglobal_store_dword v3, v4, s[26:27]{WT}")
        A(f"L_fin:")
        if stamps:
            A("s_waitcnt vmcnt(0)\ns_memrealtime s[90:91]\ns_getreg_b32 s92, hwreg(HW_REG_XCC_ID)\ns_mov_b32 s93, 0\ns_waitcnt lgkmcnt(0)")
            A(f"s_lshl_b32 s40, s2, 3\ns_add_u32 s40, s40, s28\ns_lshl_b32 s40, s40, 7\ns_add_u32 s40, s40, {STAMP}\ns_mov_b64 exec, 1\nv_mov_b32 v6, s40")
            for i in range(15):
                A(f"v_mov_b32 v8, s{64+2*i}\nv_mov_b32 v9, s{65+2*i}\nglobal_store_dwordx2 v6, v[8:9], s[26:27] offset:{8*i}")
        if "dbg" in diag:
            A("s_mov_b64 exec, 1\nv_mov_b32 v6, 0\ns_not_b32 s40, s64\nv_mov_b32 v8, s40\nglobal_atomic_umax v6, v8, s[24:25] sc1\nv_mov_b32 v8, s64\nglobal_atomic_umax v6, v8, s[24:25] offset:4 sc1\nv_mov_b32 v8, s90\nglobal_atomic_umax v6, v8, s[24:25] offset:8 sc1")
            A("s_cmp_lt_u32 s28, 4\ns_cbranch_scc0 L_end\nv_mov_b32 v8, s72\nglobal_atomic_umax v6, v8, s[24:25] offset:12 sc1\ns_not_b32 s40, s72\nv_mov_b32 v8, s40\nglobal_atomic_umax v6, v8, s[24:25] offset:16 sc1\nv_mov_b32 v8, s70\nglobal_atomic_umax v6, v8, s[24:25] offset:20 sc1\nv_mov_b32 v8, s68\nglobal_atomic_umax v6, v8, s[24:25] offset:24 sc1")
        A(f"L_end:\ns_endpgm")

    A(f"; @launch grid=(256,1,1) block=(512,1,1) lds={LDS_BYTES}")
    A(DOC.strip("\n"))
    A('.amdgcn_target "amdgcn-amd-amdhsa--gfx950"\n.text')
    A(f".globl {NAME}\n.p2align 8\n.type {NAME},@function\n{NAME}:")
    stamp(0)
    A("s_cmp_ge_u32 s2, 256\ns_cbranch_scc1 L_end")
    A("s_load_dwordx16 s[4:19], s[0:1], 0\ns_load_dwordx8 s[20:27], s[0:1], 64")
    A("v_lshrrev_b32 v1, 6, v0\nv_and_b32 v0, 63, v0")
    A("s_and_b32 s33, s2, 7\ns_lshr_b32 s34, s2, 3")
    A("v_readfirstlane_b32 s28, v1")
    A("s_lshl_b32 s31, s33, 5\ns_add_u32 s31, s31, s34\ns_lshr_b32 s29, s31, 3\ns_and_b32 s30, s31, 7")
    A("v_lshrrev_b32 v11, 4, v0\nv_and_b32 v10, 15, v0")
    A("s_mov_b32 s94, 0x40000\ns_cmp_lt_u32 s28, 4\ns_cbranch_scc0 L_hstart")
    RING = 256 - 4*R
    assert RING >= 92 and R % 4 == 0 and R0 <= R
    A("v_bfe_u32 v1, v0, 2, 2\nv_lshlrev_b32 v1, 8, v1\nv_lshl_add_u32 v1, v11, 6, v1\nv_and_b32 v3, 3, v0\nv_lshl_add_u32 v1, v3, 4, v1")
    A(f"s_lshl_b32 s40, s29, 22")
    if lg or lgw:
        A(f"s_mul_i32 s50, s29, {grot*(0x20000 << (lg+lgw)) + gsub}\ns_lshl_b32 s41, s30, {14+lg+lgw}\ns_add_u32 s50, s50, s41\ns_lshl_b32 s41, s28, {12+lgw}\ns_add_u32 s50, s50, s41\ns_and_b32 s50, s50, 0x3fffff")
    else: A(f"s_mul_i32 s50, s29, {grot*0x20000}\ns_lshl_b32 s41, s30, {(14,12,13)[slotmap]}\n" + ("" if slotmap < 2 else "s_and_b32 s95, s28, 1\ns_lshl_b32 s95, s95, 12\ns_add_u32 s41, s41, s95\n") + f"s_add_u32 s50, s50, s41\n" + (f"s_lshl_b32 s41, s28, {(12,15)[slotmap]}" if slotmap < 2 else "s_lshr_b32 s41, s28, 1\ns_lshl_b32 s41, s41, 16") + f"\ns_add_u32 s50, s50, s41\ns_and_b32 s50, s50, 0x3fffff")
    if alt: A(f"s_mov_b32 s95, {kstep*0x20000}\ns_bitcmp1_b32 s29, {alt-1}\ns_cselect_b32 s95, {(32-kstep)*0x20000}, s95")
    A("s_mov_b32 s38, 0x400000\ns_mov_b32 s39, 0x20000\ns_mov_b32 s46, 0x400000\ns_mov_b32 s47, 0x20000")
    A("s_waitcnt lgkmcnt(0)")
    A("s_add_u32 s36, s6, s40\ns_addc_u32 s37, s7, 0\ns_add_u32 s44, s8, s40\ns_addc_u32 s45, s9, 0")
    issued = [0]
    def issue_unit():
        n = issued[0]; a = n % 4
        A(f"buffer_load_dwordx4 {vr(RING + 4*(n % R))}, {'v1' if n < 128 else 'v2'}, {'s[36:39]' if n < 128 else 's[44:47]'}, s50 offen offset:{1024*a}{fl(kvfl if (n < 128 + vsplit or vfl is None) else vfl)}")
        if a == 3:
            gi_ = (n // 4) % 32
            if lg or lgw:
                m = (1 << (lg+lgw)) - 1; sub = 0x4000 if lg else 0x1000
                inc = sub if (gi_ & m) != m else (0x20000 << (lg+lgw)) - m*sub
                A(f"s_add_u32 s50, s50, {inc}\ns_and_b32 s50, s50, 0x3fffff")
            elif srot: A(f"s_add_u32 s95, s50, {srot*0x1000}\ns_and_b32 s95, s95, 0x1ffff\ns_add_u32 s50, s50, 0x20000\ns_and_b32 s50, s50, 0x3e0000\ns_or_b32 s50, s50, s95")
            else: A(f"s_add_u32 s50, s50, {'s95' if alt else kstep*0x20000}\ns_and_b32 s50, s50, 0x3fffff")
        issued[0] += 1
        if issued[0] in fine: stamp(5 + list(fine).index(issued[0]))
    for n in range(min(P, R0)): issue_unit()
    epoch_load()
    A("s_branch L_s2")

    A("L_hstart:")
    A("s_sub_u32 s35, s28, 4\nv_lshlrev_b32 v1, 4, v0\nv_and_b32 v8, 7, v10")
    A("s_cmp_eq_u32 s35, 0\ns_cbranch_scc0 L_h123")
    A("s_mul_i32 s40, s30, 589824\ns_lshl_b32 s41, s29, 8\ns_add_u32 s40, s40, s41")
    A("v_lshlrev_b32 v7, 13, v11\nv_lshl_add_u32 v7, v10, 4, v7\nv_add_u32 v7, s40, v7")
    A(f"s_mov_b32 s46, {0 if 'nowq' in diag else 4718592}\ns_mov_b32 s47, 0x20000\ns_mov_b32 s42, 0")
    A("s_waitcnt lgkmcnt(0)")
    xload()
    A("s_mov_b32 s44, s10\ns_mov_b32 s45, s11")
    def wq_issue(u):
        A(f"buffer_load_dwordx4 {vr(BIG+4*u)}, v7, s[44:47], s42 offen{fl(wfl)}")
        if u < 17: A("s_add_u32 s42, s42, 0x8000")
    for u in range(hq): wq_issue(u)
    epoch_load()
    stamp(1)
    masks()
    A(f"v_lshlrev_b32 v5, 5, v10\nv_lshl_add_u32 v5, v11, 4, v5\ns_lshl_b32 s40, s31, 9\ns_add_u32 s40, s40, {QX}\nv_add_u32 v5, s40, v5")
    A(f"s_lshl_b32 s40, s29, 12\ns_add_u32 s40, s40, {QX}\nv_add_u32 v6, s40, v1")
    if fb is not None: A(f"v_mov_b32 v9, 0\nv_mov_b32 v3, -1\nds_write_b32 v9, v3 offset:{PR}\nds_write_b32 v9, v3 offset:{PR+16}\nv_mov_b32 v3, {Linit}\nds_write_b32 v9, v3 offset:{LV}")
    A(f"s_waitcnt vmcnt({hq+2})")
    layernorm()
    A(f"s_waitcnt vmcnt({hq}) lgkmcnt(0)")
    epoch_use()
    for t in range(2): norm(24+t)
    stamp(2)
    owntag("s58")
    A("v_mov_b32 v27, s58")
    hands(24, AOP, 0)
    for u in range(18):
        if u + 1 < 18: hands(24 + ((u+1) >> 4), AOP + 4*((u+1) & 1), (u+1) & 15)
        else: A("s_nop 1")
        A(f"s_waitcnt vmcnt({min(18, hq+u)-u-1})")
        c = "0" if u == 0 else vr(64)
        A(f"v_mfma_f32_16x16x32_bf16 {vr(64)}, {vr(AOP+4*(u&1))}, {vr(BIG+4*u)}, {c}")
        if hq + u < 18: wq_issue(hq + u)
    A("s_mov_b32 exec_hi, 0\ns_nop 6")
    for r in range(4): tag(64+r, 27, 8)
    A(f"global_store_dwordx4 v5, v[64:67], s[26:27]{'' if qlocal else WT}\ns_mov_b64 exec, -1\ns_mov_b32 s41, {qto}")
    stamp(3)
    if qwait: A(f"s_sleep {qwait}")
    A("L_qpoll:")
    if qlocal: load2("s41", [f"global_load_dwordx4 {vr(BIG+4*p)}, v6, s[26:27] offset:{1024*p}" for p in range(4)], qfast)
    else:
        for p in range(4): A(f"global_load_dwordx4 {vr(BIG+4*p)}, v6, s[26:27] offset:{1024*p}{qld}")
    A("s_waitcnt vmcnt(0)")
    for r in range(BIG, BIG+16): A(f"v_xor_b32 v{r}, s58, v{r}")
    ortree(list(range(BIG, BIG+16)), 3)
    A("v_and_b32 v4, 0xf8, v3\nv_cmp_ne_u32 vcc, 0, v4\ns_cbranch_vccz L_qdone")
    if qlocal:
        A("s_sleep 4\ns_cmp_eq_u32 s41, 0\ns_cbranch_scc1 L_qpoll3\ns_sub_u32 s41, s41, 1\ns_cmp_lg_u32 s41, 0\ns_cbranch_scc1 L_qpoll2\nbuffer_wbl2 sc1\ns_waitcnt vmcnt(0)")
        A("L_qpoll3:\nbuffer_inv sc1\ns_waitcnt vmcnt(0)\nL_qpoll2:")
    loop("L_qpoll")
    A("L_qdone:\nv_and_b32 v4, 7, v3\nv_cmp_ne_u32 vcc, 0, v4")
    for r in range(BIG, BIG+16): A(f"v_and_b32 v{r}, s97, v{r}")
    A("s_cmp_eq_u64 vcc, 0\ns_cselect_b32 s40, 1, 0")
    if qlocal: A("s_cbranch_scc1 L_qloc\nbuffer_wbl2 sc1\ns_waitcnt vmcnt(0)\nL_qloc:")
    for r in range(4): A(f"v_add_f32 v{BIG+r}, v{BIG+r}, v{BIG+4+r}\nv_add_f32 v{BIG+8+r}, v{BIG+8+r}, v{BIG+12+r}")
    for r in range(4): A(f"v_add_f32 v{BIG+r}, v{BIG+r}, v{BIG+8+r}")
    for r in range(4): A(f"v_mov_b32 v{BIG+4+r}, v{BIG+r}")
    A("v_and_b32 v4, 31, v0\nv_lshlrev_b32 v4, 3, v4")
    for r in range(4): A(f"v_permlane32_swap_b32 v{BIG+4+r}, v{BIG+r}")
    for r in range(4): A(f"v_add_f32 v{BIG+r}, v{BIG+4+r}, v{BIG+r}")
    A(f"v_cvt_pk_bf16_f32 v{BIG+8}, v{BIG}, v{BIG+1}\nv_cvt_pk_bf16_f32 v{BIG+9}, v{BIG+2}, v{BIG+3}\nds_write_b64 v4, v[{BIG+8}:{BIG+9}] offset:{QL}")
    A(f"v_mov_b32 v3, s40\nv_mov_b32 v4, 0\nds_write_b32 v4, v3 offset:{WF+32}\ns_waitcnt lgkmcnt(0)")
    stamp(4)
    A("s_barrier")
    if fb:
        A(f"v_mov_b32 v9, 0\ns_lshl_b32 s40, s33, 8\ns_add_u32 s40, s40, {FBL}\nv_lshl_add_u32 v5, v0, 2, s40\ns_add_u32 s46, s40, 128\nv_mov_b32 v7, s46\ns_lshl_b32 s42, s34, 2\ns_add_u32 s40, s40, s42\nv_mov_b32 v6, s40")
        A(f"s_lshl_b32 s40, s33, 7\ns_add_u32 s40, s40, {LVG}\nv_mov_b32 v26, s40\nv_lshlrev_b32 v2, 7, v0\nv_add_u32 v2, {LVG:#x}, v2")
        A(f"s_mov_b32 s41, 0\ns_lshl_b32 s44, s63, 5\ns_and_b32 s60, s58, 1\ns_mul_i32 s60, s60, {Lpar}")
        if Lx: A(f"s_lshr_b32 s60, s33, 2\ns_mul_i32 s60, s60, {Lx}")
        A(f"L_fb:\nds_read_b32 v3, v9 offset:{PR}\ns_waitcnt lgkmcnt(0)\nv_readfirstlane_b32 s40, v3\ns_cmp_ge_i32 s40, s41\ns_cbranch_scc1 L_fb2\ns_sleep 4")
        A("s_sub_u32 s94, s94, 1\ns_cbranch_scc0 L_fb\ns_branch L_hC")
        A(f"L_fb2:\ns_add_u32 s45, s44, s41\nv_mov_b32 v4, s45\ns_mov_b32 exec_hi, {1 if GX else 0}\nglobal_load_dword v3, v5, s[26:27] nt\ns_mov_b64 exec, 1\nglobal_store_dword v6, v4, s[26:27]")
        A(f"s_mov_b32 exec_lo, -1\ns_waitcnt vmcnt(1)")
        if GX: A(f"v_readlane_b32 s46, v3, 32\ns_sub_u32 s46, s46, s44\ns_cmp_lt_u32 s46, 32\ns_cselect_b32 s46, s46, {X0}")
        A(f"v_sub_u32 v3, v3, v4\nv_cmp_gt_u32 vcc, 32, v3\ns_bcnt1_i32_b64 s42, vcc\ns_mov_b64 exec, 1")
        A(f"s_mul_i32 s40, s42, {G}\ns_lshr_b32 s40, s40, 5\ns_add_u32 s40, s40, {L0}")
        if GX: A("s_add_u32 s40, s40, s46")
        if Lpar or Lx: A("s_add_u32 s40, s40, s60")
        if LV2:
            nv = sum(1 for q in fb if q < 152)
            A(f"s_cmp_ge_u32 s41, {nv}\ns_cselect_b32 s46, {LV2}, 0\ns_add_u32 s40, s40, s46")
        A(f"v_mov_b32 v3, s40\nds_write_b32 v9, v3 offset:{LV}")
        if GX:
            A(f"s_sub_u32 s42, s42, 15\ns_cmp_lt_u32 s42, 2\ns_cbranch_scc0 L_fb3\ns_mov_b32 s42, {gxmask}\ns_bitcmp1_b32 s42, s41\ns_cbranch_scc0 L_fb3")
            A(f"s_mov_b64 exec, 0xff\nglobal_load_dword v3, v2, s[26:27]{WT}\ns_mov_b64 exec, 1\nglobal_store_dword v26, v4, s[26:27]{WT}\ns_mov_b64 exec, 0xff\ns_waitcnt vmcnt(1)")
            A(f"v_sub_u32 v3, v3, v4\nv_cmp_gt_u32 vcc, 32, v3\ns_bcnt1_i32_b64 s42, vcc\ns_min_u32 s42, s42, 7\ns_max_u32 s42, s42, {gxoff}\ns_sub_u32 s42, s42, {gxoff}\ns_mul_i32 s42, s42, {GX}\ns_lshr_b32 s42, s42, 3\ns_add_u32 s42, s42, s44\ns_mov_b64 exec, 1\nv_mov_b32 v3, s42\nglobal_store_dword v7, v3, s[26:27]\nL_fb3:")
        A(f"s_mov_b64 exec, -1\ns_add_u32 s41, s41, 1\ns_cmp_lt_u32 s41, {len(fb)}\ns_cbranch_scc1 L_fb")
    A("s_branch L_hC")
    A("L_h123:")
    A("s_waitcnt lgkmcnt(0)")
    epoch_load()
    A("s_cmp_eq_u32 s35, 3\ns_cbranch_scc1 L_h3")
    A("s_and_b32 s56, s29, 3\ns_mov_b32 s57, 1\nv_mov_b32 v9, v10\ns_cmp_eq_u32 s35, 1\ns_cbranch_scc1 L_gu")
    A("s_cmp_eq_u32 s56, 0\ns_mov_b32 s56, 4\ns_mov_b32 s57, 0\nv_mov_b32 v9, v8\ns_cbranch_scc1 L_gu")
    masks()
    A("s_waitcnt lgkmcnt(0)"); epoch_use()
    A("s_barrier\ns_branch L_hC")
    A("L_gu:")
    xload()
    masks()
    A(f"s_waitcnt vmcnt(2)")
    layernorm()
    A(f"s_waitcnt vmcnt(0) lgkmcnt(0)")
    epoch_use()
    for t in range(2): norm(24+t)
    A("s_barrier")
    A("s_mul_i32 s40, s33, 1152\ns_lshl_b32 s41, s56, 8\ns_add_u32 s40, s40, s41")
    A("s_add_u32 s44, s16, s40\ns_addc_u32 s45, s17, 0\ns_sub_u32 s46, 5308416, s40\ns_mov_b32 s47, 0x20000")
    A("s_add_u32 s52, s18, s40\ns_addc_u32 s53, s19, 0\ns_mov_b32 s54, s46\ns_mov_b32 s55, 0x20000")
    if "nogu" in diag: A("s_mov_b32 s46, 0\ns_mov_b32 s54, 0")
    A("s_mul_i32 s40, s30, 663552\ns_mov_b32 s42, 9216\nv_mul_lo_u32 v6, v11, s42\nv_lshl_add_u32 v6, v9, 4, v6\nv_add_u32 v6, s40, v6")
    def gu_issue(k):
        u, mat = divmod(k, 2)
        if mat == 0: A(f"s_mov_b32 s42, {4*u*9216}")
        A(f"buffer_load_dwordx4 {vr(BIG+4*k)}, v6, {'s[52:55]' if mat else 's[44:47]'}, s42 offen{fl(wfl)}")
    gi = 0
    while gi < hD: gu_issue(gi); gi += 1
    A("v_mov_b32 v27, s96")
    hands(24, AOP, 0)
    for k in range(36):
        u, mat = divmod(k, 2)
        if mat == 0:
            if u + 1 < 18: hands(24 + ((u+1) >> 4), AOP + 4*((u+1) & 1), (u+1) & 15)
            else: A("s_nop 1")
        A(f"s_waitcnt vmcnt({gi-k-1})")
        d = 64 + 4*mat
        c = "0" if u == 0 else vr(d)
        A(f"v_mfma_f32_16x16x32_bf16 {vr(d)}, {vr(AOP+4*(u&1))}, {vr(BIG+4*k)}, {c}")
        if gi < 36: gu_issue(gi); gi += 1
    owntag("s58")
    A(f"s_lshl_b32 s40, s33, 14\ns_add_u32 s40, s40, {QX}\nv_and_b32 v3, 31, v0\nv_lshl_add_u32 v3, v3, 9, s40\nglobal_load_dwordx4 v[72:75], v3, s[26:27] offset:496{gchk if qlocal else qld}")
    A(f"s_mul_i32 s40, s33, 5\ns_add_u32 s40, s40, s56\ns_lshl_b32 s40, s40, 3\ns_add_u32 s40, s40, s30\ns_lshl_b32 s40, s40, 10\ns_add_u32 s40, s40, {GUG}\nv_lshlrev_b32 v5, 5, v10\nv_lshl_add_u32 v5, v11, 4, v5\nv_add_u32 v5, s40, v5")
    for r in range(8): tag(64+r, 27, 8)
    A("s_waitcnt vmcnt(0)")
    for r in range(72, 76): A(f"v_xor_b32 v{r}, s58, v{r}")
    ortree([72, 73, 74, 75], 4)
    A("v_and_b32 v4, 0xff, v4\nv_cmp_ne_u32 vcc, 0, v4\ns_cmp_eq_u64 vcc, 0\ns_cselect_b32 s59, 1, 0\ns_mov_b32 exec_hi, 0")
    store2("s59", ["global_store_dwordx4 v5, v[64:67], s[26:27]", "global_store_dwordx4 v5, v[68:71], s[26:27] offset:512"])
    A("s_mov_b64 exec, -1")
    stamp(4)
    A("s_cmp_eq_u32 s57, 0\ns_cbranch_scc1 L_hC")
    for _ in range(gwait): A("s_sleep 127")
    A(f"s_mul_i32 s40, s34, 18\nv_add_u32 v3, s40, v11\ns_mul_i32 s40, s33, 40960\ns_add_u32 s40, s40, {GUG}\nv_lshl_add_u32 v7, v8, 10, s40")
    for rq in range(5):
        A(f"v_add_u32 v4, {4*rq}, v3\nv_min_u32 v4, 575, v4\nv_lshrrev_b32 v5, 7, v4\nv_lshl_add_u32 v5, v5, 13, v7\nv_and_b32 v4, 127, v4\nv_lshl_add_u32 v{16+rq}, v4, 2, v5")
    A("L_gpoll:")
    G0 = 28
    load2("s59", [f"global_load_dword v{G0+2*rq+mat}, v{16+rq}, s[26:27] offset:{512*mat}" for rq in range(5) for mat in range(2)])
    A(f"s_waitcnt vmcnt(0)")
    check(list(range(G0, G0+10)), 3, 8)
    A(f"s_cbranch_vccz L_gdone\ns_sleep {gsleep}")
    loop("L_gpoll")
    A("L_gdone:")
    for c in RED8:
        for k in range(10): A(f"v_add_f32_dpp v{G0+k}, v{G0+k}, v{G0+k} {c} {DPPF}")
    for rq in range(5):
        b = G0+2*rq
        A(f"v_cvt_pk_bf16_f32 v{b}, v{b}, v{b+1}\nv_and_b32 v{b+1}, 0xffff0000, v{b}\nv_lshlrev_b32 v{b}, 16, v{b}\nv_mul_f32 v{b}, v{b}, v{b+1}\nv_cvt_pk_bf16_f32 v{b}, v{b}, v{b}")
    A(f"s_mov_b32 exec_lo, 0\nv_mov_b32 v{G0+8}, 0\ns_mov_b64 exec, -1")
    A(f"v_mul_u32_u24 v3, 40, v11\ns_mov_b32 exec_lo, 0x00010001\ns_mov_b32 exec_hi, 0x00010001")
    for rq in range(5): A(f"v_mov_b32 v{G0+2*rq+1}, s63\nds_write_b64 v3, v[{G0+2*rq}:{G0+2*rq+1}] offset:{HB+8*rq}")
    A("s_mov_b64 exec, -1\ns_waitcnt lgkmcnt(0)")
    stamp(5)
    A("s_branch L_hC")
    A("L_h3:")
    if tlb:
        A(f"s_lshl_b32 s40, s29, 22\ns_add_u32 s44, s6, s40\ns_addc_u32 s45, s7, 0\ns_add_u32 s52, s8, s40\ns_addc_u32 s53, s9, 0\ns_lshl_b32 s40, s29, 17")
        A("v_lshl_add_u32 v100, v0, 16, s40\nv_and_b32 v100, 0x3fffff, v100")
        if tlb == 2: A("s_cmp_eq_u32 s30, 0\ns_cbranch_scc0 L_notlb")
        A("global_load_dword v101, v100, s[44:45] nt")
        if tlbv == 1: A("global_load_dword v102, v100, s[52:53] nt")
        A("L_notlb:")
    masks()
    A("s_waitcnt lgkmcnt(0)"); epoch_use()
    A(f"v_mov_b32 v27, s43\ns_not_b32 s40, s63\nv_mov_b32 v3, s40\nv_lshlrev_b32 v4, 2, v10\nds_write_b32 v4, v3 offset:{ML4}\nv_lshlrev_b32 v4, 2, v8\nds_write_b32 v4, v3 offset:{WF}\nv_lshlrev_b32 v4, 2, v0\nds_write_b32 v4, v3 offset:{HB}\ns_waitcnt lgkmcnt(0)\ns_barrier")
    if tlb and tlbv == 2:
        A("s_sleep 127\ns_sleep 127\nglobal_load_dword v102, v100, s[52:53] nt")
    WO = 212
    WD = 112; HA = 192
    def late_loads(h3):
        t = lab("hb")
        A(f"v_mul_u32_u24 v3, 40, v11\n{t}:\ns_sleep 8\nds_read_b64 v[28:29], v3 offset:{HB}\nds_read_b64 v[30:31], v3 offset:{HB+8}\nds_read_b64 v[32:33], v3 offset:{HB+16}\nds_read_b64 v[34:35], v3 offset:{HB+24}\nds_read_b64 v[36:37], v3 offset:{HB+32}\ns_waitcnt lgkmcnt(0)")
        for q in range(5): A(f"v_xor_b32 v{29+2*q}, s63, v{29+2*q}")
        ortree([29, 31, 33, 35, 37], 4)
        A(f"v_cmp_ne_u32 vcc, 0, v4\ns_cbranch_vccz {t}d")
        loop(t)
        A(f"{t}d:")
        for q in range(5): hands(28+2*q, HA+4*q)
        A("s_mul_i32 s40, s31, 18432\ns_add_u32 s44, s12, s40\ns_addc_u32 s45, s13, 0\ns_mov_b32 s46, 18432\ns_mov_b32 s47, 0x20000")
        A("s_mul_i32 s40, s31, 20736\ns_add_u32 s88, s20, s40\ns_addc_u32 s89, s21, 0\ns_mov_b32 s90, 20736\ns_mov_b32 s91, 0x20000" if not stamps else
          "s_mul_i32 s40, s31, 20736\ns_add_u32 s36, s20, s40\ns_addc_u32 s37, s21, 0\ns_mov_b32 s38, 20736\ns_mov_b32 s39, 0x20000")
        if "nolate" in diag: A("s_mov_b32 s46, 0\ns_mov_b32 s90, 0")
        DS = "s[88:91]" if not stamps else "s[36:39]"
        A("s_lshl_b32 s40, s35, 8\nv_lshl_add_u32 v28, v10, 4, s40\nv_lshlrev_b32 v29, 4, v8\nv_add_u32 v29, 0x400, v29")
        A("v_mul_u32_u24 v4, 4608, v11\nv_add_u32 v30, v4, v28\nv_add_u32 v31, v4, v29\nv_mul_u32_u24 v4, 1152, v11\nv_add_u32 v28, v4, v28\nv_add_u32 v29, v4, v29")
        A("s_mov_b32 s48, 4608\ns_mov_b32 s49, 9216\ns_mov_b32 s50, 13824\ns_mov_b32 s62, 18432")
        t = lab("tr")
        A(f"{t}:\nds_read_b32 v3, v9 offset:{PR+16}\ns_waitcnt lgkmcnt(0)\nv_readfirstlane_b32 s40, v3\ns_cmp_eq_u32 s40, 100\ns_cbranch_scc1 {t}d\ns_sleep {tsleep}")
        loop(t)
        A(f"{t}d:")
        if tdelay: A(f"s_sleep {tdelay}")
        if tk:
            t2 = lab("tk")
            A(f"ds_read_b32 v3, v9 offset:{LV}\ns_waitcnt lgkmcnt(0)\nv_readfirstlane_b32 s40, v3\ns_sub_u32 s40, {L0+G-1}, s40\ns_min_u32 s40, s40, {G}\ns_mul_i32 s40, s40, {tk}")
            A(f"{t2}:\ns_cmp_eq_u32 s40, 0\ns_cbranch_scc1 {t2}d\ns_sleep 4\ns_sub_u32 s40, s40, 1\ns_branch {t2}\n{t2}d:")
        W_ = f"s_waitcnt vmcnt({lD-1})\n" if lD else ""
        lo = [f"buffer_load_dwordx4 {vr(WO+16*pb+4*rq)}, v{30+pb}, s[44:47], 0 offen offset:{rq*1152}{fl(wfl)}" for pb in range(2 if h3 else 1) for rq in range(4)]
        ld = [f"buffer_load_dwordx4 {vr(WD+20*pb+4*rq)}, v{28+pb}, {DS}, {('0','s48','s49','s50','s62')[rq]} offen{fl(wfl)}" for pb in range(2 if h3 else 1) for rq in range(5)]
        al = ld + lo if wdfirst else lo + ld
        k1 = len(al) if n1 is None else (2*n1 if h3 else n1)
        for x in al[:k1]: A(W_ + x)
        A("s_barrier")
        for x in al[k1:]: A(x)
        stamp(6)
    def tail_setup(h3):
        if omerge:
            A(f"s_lshl_b32 s40, s29, 12\ns_lshl_b32 s41, s30, 6\ns_add_u32 s40, s40, s41\ns_add_u32 s40, s40, {OX}\nv_lshlrev_b32 v7, 9, v8\nv_lshl_add_u32 v7, v11, 4, v7\nv_add_u32 v7, s40, v7")
            A(f"v_and_b32 v4, 1, v11\nv_lshlrev_b32 v4, 4, v4\nv_lshl_add_u32 v4, v10, 5, v4\ns_lshl_b32 s40, s31, 9\ns_add_u32 s40, s40, {OX}\nv_add_u32 v6, s40, v4\nv_mov_b32 v75, v4")
            A(f"v_mov_b32 v3, 0\nds_read_b32 v3, v3 offset:{WF+32}\ns_waitcnt lgkmcnt(0)\nv_readfirstlane_b32 s59, v3")
        else:
            A(f"s_lshl_b32 s40, s29, 14\ns_lshl_b32 s41, s30, 6\ns_add_u32 s40, s40, s41\ns_add_u32 s40, s40, {OX}\nv_lshlrev_b32 v7, 9, v10\nv_lshl_add_u32 v7, v11, 4, v7\nv_add_u32 v7, s40, v7\nv_add_u32 v6, 0x2000, v7")
        A(f"v_lshlrev_b32 v5, 5, v10\nv_lshl_add_u32 v5, v11, 4, v5\ns_mul_i32 s40, s31, 2304\ns_lshl_b32 s41, s35, 9\ns_add_u32 s40, s40, s41\nv_add_u32 v5, s40, v5\nv_mov_b32 v9, 0")
        A(f"v_mov_b32 v27, s43")
        final_setup()
        A("s_waitcnt vmcnt(0)")
    tail_setup(True)
    if dry: A("s_mov_b32 s98, 0\ns_mov_b32 s99, 0\ns_mov_b64 exec, 0\ns_branch L_tail\nL_real:\ns_mov_b32 s98, -1\ns_mov_b32 s99, -1\ns_mov_b64 exec, -1")
    A("L_m4:\ns_sleep 16")
    for w in range(4): A(f"ds_read_b128 {vr(28+4*w)}, v9 offset:{ML4+16*w}")
    A("s_waitcnt lgkmcnt(0)")
    for w in range(4): A(f"v_xor_b32 v{29+4*w}, s63, v{29+4*w}\nv_xor_b32 v{31+4*w}, s63, v{31+4*w}")
    ortree([29, 31, 33, 35, 37, 39, 41, 43], 3)
    A("v_cmp_ne_u32 vcc, 0, v3\ns_cbranch_vccz L_m4d")
    loop("L_m4")
    A("L_m4d:\nv_max3_f32 v16, v28, v32, v36\nv_max_f32 v16, v16, v40")
    for w in range(4): A(f"v_sub_f32 v{20+w}, v{28+4*w}, v16")
    for w in range(4): A(f"v_exp_f32 v{20+w}, v{20+w}")
    A("v_mov_b32 v17, s63\nv_mov_b32 v19, s63\nv_mul_f32 v18, v30, v20\nv_fmac_f32 v18, v34, v21\nv_fmac_f32 v18, v38, v22\nv_fmac_f32 v18, v42, v23")
    A(f"s_lshl_b32 s40, s31, 7\ns_add_u32 s40, s40, {MLG}\nv_add_u32 v3, s40, v1\ns_mov_b64 exec, 0xff")
    store2("s59", ["global_store_dwordx4 v3, v[16:19], s[26:27]"])
    A(f"s_mov_b64 exec, -1\ns_lshl_b32 s40, s29, 10\ns_add_u32 s40, s40, {MLG}\nv_lshl_add_u32 v4, v8, 7, s40")
    A(f"L_mlp:\ns_sleep 32")
    load2("s59", ["global_load_dwordx4 v[28:31], v4, s[26:27]"])
    A("s_waitcnt vmcnt(0)")
    A("v_xor_b32 v29, s63, v29\nv_xor_b32 v31, s63, v31\nv_or_b32 v3, v29, v31\nv_cmp_ne_u32 vcc, 0, v3\ns_cbranch_vccz L_mld")
    loop("L_mlp")
    A("L_mld:\nv_mov_b32 v24, v28")
    for c in RED8: A(f"s_nop 1\nv_max_f32_dpp v24, v24, v24 {c} {DPPF}")
    A("v_sub_f32 v25, v28, v24\nv_exp_f32 v25, v25\ns_nop 0\nv_mul_f32 v25, v30, v25")
    for c in RED8: A(f"s_nop 1\nv_add_f32_dpp v25, v25, v25 {c} {DPPF}")
    A("v_rcp_f32 v25, v25\nv_sub_f32 v24, v16, v24\nv_exp_f32 v24, v24\ns_nop 0\nv_mul_f32 v24, v24, v25")
    for w in range(4): A(f"v_mul_f32 v{28+2*w}, v{20+w}, v24\nv_mov_b32 v{29+2*w}, s63")
    A(f"ds_write_b128 v9, v[28:31] offset:{WF}\nds_write_b128 v9, v[32:35] offset:{WF+16}\ns_waitcnt lgkmcnt(0)")
    stamp(10)
    late_loads(True)
    A("L_tail:")
    stamp(7)
    if omerge:
        A("s_cmp_eq_u32 s35, 3\ns_cbranch_scc0 L_nom")
        for w in range(4): A(f"ds_read_b128 {vr(52+4*w)}, v75 offset:{OP+512*w}")
        A("s_waitcnt lgkmcnt(2)")
        for r in range(4): A(f"v_add_f32 v{52+r}, v{52+r}, v{56+r}")
        A("s_waitcnt lgkmcnt(0)")
        for r in range(4): A(f"v_add_f32 v{60+r}, v{60+r}, v{64+r}")
        for r in range(4): A(f"v_add_f32 v{52+r}, v{52+r}, v{60+r}")
        for r in range(4): tag(52+r, 27)
        A("s_mov_b32 exec_hi, 0")
        store2("s59", ["global_store_dwordx4 v6, v[52:55], s[26:27]"])
        exall()
        A("L_nom:")
    if ofirst: A(f"s_sleep {ofirst}")
    if NPO > 1: ppoll("L_op", NPO, [7, 6], 32, 112, ldl, ogap, 26)
    else:
        if "rtt" in diag: A("s_mov_b32 s95, 0")
        A("s_mov_b32 s42, 1\nL_oxc:")
        if "rtt" in diag: stamp(1); A("s_add_u32 s95, s95, 1")
        assert omerge
        load2("s59", ["global_load_dwordx4 v[32:35], v7, s[26:27]"])
        A("s_waitcnt vmcnt(0)\ns_cmp_eq_u32 s42, 0\ns_cbranch_scc1 L_nowd\ns_mov_b32 s42, 0")
        for rq in range(5): A(f"v_mfma_f32_16x16x32_bf16 v[44:47], {vr(HA+4*rq)}, {vr(WD+4*rq)}, {'0' if rq == 0 else 'v[44:47]'}")
        A("s_cmp_eq_u32 s35, 3\ns_cbranch_scc0 L_nowd")
        for rq in range(5): A(f"v_mfma_f32_16x16x32_bf16 v[48:51], {vr(HA+4*rq)}, {vr(WD+20+4*rq)}, {'0' if rq == 0 else 'v[48:51]'}")
        A("L_nowd:")
        if "rtt" in diag: stamp(2); A("s_waitcnt lgkmcnt(0)\ns_mov_b32 s70, s95\ns_mov_b32 s71, 0")
        check(list(range(32, 36 if omerge else 40)), 26)
        A("s_and_b64 exec, exec, vcc\ns_cbranch_execz L_oxd")
        if osleep: A(f"s_sleep {osleep}")
        loop("L_oxc")
        A("L_oxd:"); exall()
    stamp(8)
    if not omerge:
        for r in range(4): A(f"v_add_f32 v{32+r}, v{32+r}, v{36+r}")
    else: A("s_nop 0")
    for c in (RED8 if omerge else RED16):
        for r in range(4): A(f"v_add_f32_dpp v{32+r}, v{32+r}, v{32+r} {c} {DPPF}")
    for r in range(4): A(f"v_cvt_pk_bf16_f32 v{32+r}, v{32+r}, v{32+r}")
    for r in range(4): hands(32+r, AOP+4*r)
    A("s_nop 0")
    for rq in range(4): A(f"v_mfma_f32_16x16x32_bf16 v[44:47], {vr(AOP+4*rq)}, {vr(WO+4*rq)}, v[44:47]")
    A("s_cmp_eq_u32 s35, 3\ns_cbranch_scc0 L_y1")
    for rq in range(4): A(f"v_mfma_f32_16x16x32_bf16 v[48:51], {vr(AOP+4*rq)}, {vr(WO+16+4*rq)}, v[48:51]")
    A("L_y1:\ns_mov_b32 exec_hi, 0\ns_nop 4")
    for r in range(4): tag(44+r, 27)
    A(f"global_store_dwordx4 v5, v[44:47], s[26:27]{pst}\ns_cbranch_scc0 L_y3\ns_and_b32 exec_lo, s98, 0x00ff00ff")
    for r in range(4): tag(48+r, 27)
    A(f"global_store_dwordx4 v5, v[48:51], s[26:27] offset:512{pst}\nL_y3:"); exall()
    stamp(9)
    final()
    A("L_hC:")
    tail_setup(False)
    late_loads(False)
    A("s_branch L_tail")

    A("L_s2:")
    masks()
    S = 60
    A("v_lshlrev_b32 v2, 4, v0")
    A("v_and_b32 v3, 3, v10\nv_lshl_add_u32 v3, v11, 2, v3\nv_lshlrev_b32 v3, 4, v3")
    A("s_mov_b32 s52, 0x000f000f\ns_mov_b32 s53, 0x000f000f\ns_mov_b32 s54, 0x00f000f0\ns_mov_b32 s55, 0x00f000f0")
    A("s_mov_b32 s56, 0x0f000f00\ns_mov_b32 s57, 0x0f000f00\ns_mov_b32 s58, 0xf000f000\ns_mov_b32 s59, 0xf000f000")
    A(f"s_mov_b32 s60, {SCALE:#x}\ns_mov_b32 s61, {LOG2E:#x}\nv_mov_b32 v52, 0xff800000")
    if omerge: A("s_lshl_b32 s40, s28, 9")
    else: A(f"s_lshl_b32 s40, s31, 2\ns_add_u32 s40, s40, s28\ns_lshl_b32 s40, s40, 9\ns_add_u32 s40, s40, {OX}")
    A(f"v_lshlrev_b32 v57, 5, v10\nv_lshl_add_u32 v57, v11, 4, v57\nv_add_u32 v57, s40, v57")
    A("s_lshl_b32 s41, s28, 4\nv_mov_b32 v58, s41\ns_lshl_b32 s41, s28, 3\nv_mov_b32 v9, s41\nv_mov_b32 v8, 0")
    while issued[0] < R0:
        A(f"s_waitcnt vmcnt({P-1})"); issue_unit()
    stamp(1)
    A("s_barrier")
    stamp(2)
    A(f"ds_read_b128 v[4:7], v3 offset:{QL}\nds_read_b32 v8, v8 offset:{WF+32}")
    A("s_waitcnt lgkmcnt(0)")
    for u in range(4):
        for w in range(4): A(f"v_cndmask_b32 v{16+4*u+w}, 0, v{4+w}, s[{52+2*u}:{53+2*u}]")
    A("v_mov_b32 v53, 0\nv_readfirstlane_b32 s42, v8")
    epoch_use()
    A("v_mov_b32 v59, s43")
    if fb is not None:
        assert RING >= 96
        A(f"v_mov_b32 v8, 0\ns_lshl_b32 s41, s28, 2\nv_mov_b32 v3, s41\ns_mov_b32 s41, {Linit}")
    def post(i):
        d = 32 + 4*(i & 1); t = S + i
        A(f"v_mov_b32_dpp v{t}, v{d} quad_perm:[0,0,0,0] {DPPF}\nv_mov_b32_dpp v55, v{d+2} quad_perm:[2,2,2,2] {DPPF}\ns_nop 0")
        A(f"v_add_f32_dpp v{t}, v{d+1}, v{t} quad_perm:[1,1,1,1] {DPPF}\nv_add_f32_dpp v55, v{d+3}, v55 quad_perm:[3,3,3,3] {DPPF}")
        A(f"v_add_f32 v{t}, v{t}, v55")
        if i & 1:
            a, b = t-1, t
            A(f"v_cvt_pk_bf16_f32 v56, v{a}, v{b}\nv_lshlrev_b32 v{a}, 16, v56\nv_and_b32 v{b}, 0xffff0000, v56")
            A(f"v_mul_f32 v{a}, s60, v{a}\nv_mul_f32 v{b}, s60, v{b}")
            A(f"v_cvt_pk_bf16_f32 v56, v{a}, v{b}\nv_lshlrev_b32 v{a}, 16, v56\nv_and_b32 v{b}, 0xffff0000, v56")
            A(f"v_max3_f32 v52, v52, v{a}, v{b}")
    since = [0]; extra = [0]
    def throttle():
        ph = issued[0] % 4; t = lab("t")
        for d in range(Dhi-1, Dlo-1, -1):
            A(f"s_cmp_ge_u32 s41, {4*(d+1)-ph}\ns_cbranch_scc1 {t}\ns_waitcnt vmcnt({d-1 + (1 if issued[0]-d < extra[0] else 0)})")
        A(f"{t}:")
    def fb_hooks():
        n = issued[0]
        pts = list(fb)
        if n == ktrig: A(f"v_mov_b32 v56, 100\nds_write_b32 v3, v56 offset:{PR+16}")
        if n in pts: A(f"v_mov_b32 v56, {pts.index(n)}\nds_write_b32 v3, v56 offset:{PR}")
        if n % 8 == 0: A(f"ds_read_b32 v11, v8 offset:{LV}")
        if n % 8 == 2: A("s_waitcnt lgkmcnt(0)\nv_readfirstlane_b32 s41, v11")
    def after_consume(k):
        since[0] += 1
        if fb is not None:
            if issued[0] < 256 and issued[0] - R <= k and (issued[0] - (k+1) < Dhi or since[0] >= cu):
                if issued[0] - (k+1) >= Dhi: A(f"s_waitcnt vmcnt({Dhi-1})")
                if issued[0] < kb: throttle()
                issue_unit(); since[0] = 0; fb_hooks()
            while Db and kb <= issued[0] < 256 and issued[0] - (k+1) < Db:
                issue_unit(); fb_hooks()
            return
        while issued[0] < 256 and issued[0] - R <= k:
            lag = issued[0] - (k+1)
            Dk = D if issued[0] < 128 else DV
            Dk = int(Dk*(k+1) + 1e-9) - int(Dk*k + 1e-9)
            if lag < Dk: issue_unit(); since[0] = 0
            elif since[0] >= cu:
                A(f"s_waitcnt vmcnt({Dk-1})"); issue_unit(); since[0] = 0; break
            else: break
    for k in range(128):
        i, a = divmod(k, 4); d = 32 + 4*(i & 1)
        A(f"s_waitcnt vmcnt({issued[0]-k-1})")
        c = "0" if a == 0 else vr(d)
        A(f"v_mfma_f32_16x16x32_bf16 {vr(d)}, {vr(RING+4*(k%R))}, {vr(16+4*a)}, {c}")
        after_consume(k)
        if a == 3 and i > 0: post(i-1)
    A("s_nop 7")
    post(31)
    stamp(3)
    R4 = ("row_ror:4 "+DPPF, "row_ror:8 "+DPPF, "row_bcast:15 row_mask:0xa bank_mask:0xf", "row_bcast:31 row_mask:0xc bank_mask:0xf")
    for c in R4: A(f"s_nop 1\nv_max_f32_dpp v52, v52, v52 {c}")
    A("s_nop 0\nv_readlane_b32 s62, v52, 63\ns_nop 1\nv_mov_b32 v54, s62\nv_mul_f32 v54, s61, v54")
    def expo(i):
        A(f"v_fma_f32 v{S+i}, v{S+i}, s61, -v54\nv_fma_f32 v{S+i+1}, v{S+i+1}, s61, -v54")
        A(f"v_exp_f32 v{S+i}, v{S+i}\nv_exp_f32 v{S+i+1}, v{S+i+1}\ns_nop 0")
        A(f"v_add_f32 v53, v53, v{S+i}\nv_cvt_pk_bf16_f32 v{S+i}, v{S+i}, v{S+i}")
        A(f"v_add_f32 v53, v53, v{S+i+1}\nv_cvt_pk_bf16_f32 v{S+i+1}, v{S+i+1}, v{S+i+1}")
    expo(0)
    A("s_nop 1")
    def ands(k):
        i, a = divmod(k, 4); o = 44 + 4*(k & 1)
        for w in range(4): A(f"v_and_b32_dpp v{o+w}, v{S+i}, v{12+w} row_newbcast:{4*a} {DPPF}")
    ands(0)
    for k in range(128):
        i, a = divmod(k, 4); n = 128 + k; o = 44 + 4*(k & 1)
        if k % 2 == 0 and 2 + k < 32: expo(2 + k)
        if k == kml:
            for c in R4: A(f"s_nop 1\nv_add_f32_dpp v53, v53, v53 {c}")
            A(f"v_mov_b32 v4, v54\nv_mov_b32 v5, s63\nv_mov_b32 v6, v53\nv_mov_b32 v7, s63\ns_mov_b32 exec_lo, 0\ns_mov_b32 exec_hi, 0x80000000")
            A(f"ds_write_b128 v58, v[4:7] offset:{ML4}\ns_mov_b64 exec, -1")
        if k == kwf: A(f"ds_read_b64 v[4:5], v9 offset:{WF}")
        if k == kpre:
            assert RING >= 96
            for r in range(4): A(f"v_not_b32 v{92+r}, v59")
            A("s_mov_b32 exec_hi, 0")
            store2("s42", ["global_store_dwordx4 v57, v[92:95], s[26:27]"])
            A("s_mov_b64 exec, -1")
            extra[0] = issued[0]
        if k + 1 < 128: ands(k+1)
        else: A("s_nop 1")
        A(f"s_waitcnt vmcnt({issued[0]-n-1 + (1 if n < extra[0] else 0)})")
        c = "0" if k == 0 else vr(40)
        A(f"v_mfma_f32_16x16x32_bf16 {vr(40)}, {vr(o)}, {vr(RING+4*(n%R))}, {c}")
        after_consume(n)
    A(f"L_wf:\ns_waitcnt lgkmcnt(0)\nv_cmp_ne_u32 vcc, s63, v5\ns_cbranch_vccz L_wfd\ns_sleep 1\nds_read_b64 v[4:5], v9 offset:{WF}")
    loop("L_wf")
    A("L_wfd:\ns_mov_b32 exec_hi, 0\ns_nop 3")
    for r in range(4): A(f"v_mul_f32 v{40+r}, v{40+r}, v4")
    if omerge:
        A(f"ds_write_b128 v57, v[40:43] offset:{OP}\ns_waitcnt lgkmcnt(0)")
    else:
        for r in range(4): tag(40+r, 59)
        store2("s42", ["global_store_dwordx4 v57, v[40:43], s[26:27]"])
    A("s_mov_b64 exec, -1")
    stamp(4)
    A("s_barrier")
    final_setup()
    A("s_branch L_final")
    A(f""".section .rodata,"a"
.p2align 6
.amdhsa_kernel {NAME}
  .amdhsa_next_free_vgpr 256
  .amdhsa_next_free_sgpr 100
  .amdhsa_accum_offset 256
  .amdhsa_group_segment_fixed_size 0
  .amdhsa_kernarg_size 96
  .amdhsa_user_sgpr_count 2
  .amdhsa_user_sgpr_kernarg_segment_ptr 1
  .amdhsa_system_sgpr_workgroup_id_x 1
.end_amdhsa_kernel""")
    return HEADER + "\n".join(L) + "\n"

if __name__ == "__main__":
    kw = eval("dict(" + (sys.argv[2] if len(sys.argv) > 2 else "") + ")")
    s = gen(**kw)
    open(sys.argv[1], "w").write(s)
    import hazard
    pr = hazard.check(s)
    print("\n".join(pr) if pr else "no hazards")
```
